```python
import torch

def _softmax(x, axis=-1):
    return torch.softmax(x, dim=axis)
def _gelu(x):
    return torch.nn.functional.gelu(x, approximate="tanh")
def _silu(x):
    return torch.nn.functional.silu(x)
def _sigmoid(x):
    return torch.sigmoid(x)
def _layernorm(x, axis=-1, eps=1e-5):
    m = x.mean(dim=axis, keepdim=True)
    v = x.var(dim=axis, keepdim=True, unbiased=False)
    return (x - m) / torch.sqrt(v + eps)
def _scatter_add(tgt, idx, src, axis=0):
    return tgt.clone().index_add_(axis, idx, src)
def _segment_sum(src, seg, n):
    out = torch.zeros((n,) + src.shape[1:], dtype=src.dtype)
    return out.index_add_(0, seg, src)
def _pad(x, pw):
    flat = tuple(v for pair in reversed(pw) for v in pair)
    return torch.nn.functional.pad(x, flat)

kernel_name = 'interleave_layers__linear_kernel_hedgehog__dense_activation_gelu__prompt'

def setup_inputs():

    _w = (lambda a: (lambda t: t.to(torch.bfloat16) if t.is_floating_point() else t)(torch.as_tensor(a)))
    def _A_setup():
        B, S, D, H = 1, 2048, 448, 16
        Dh = D // H
        return {
            "x": _w((lambda *s: torch.randn(*s, dtype=torch.bfloat16) * 0.05)(B, S, D)),
            "wqkv": _w((lambda *s: torch.randn(*s, dtype=torch.bfloat16) * 0.4)(D, 3 * D)),
            "w_phi": _w((lambda *s: torch.randn(*s, dtype=torch.bfloat16) * 0.4)(H, Dh, Dh) * (Dh ** -0.5)),
            "wo": _w((lambda *s: torch.randn(*s, dtype=torch.bfloat16) * 0.05)(D, D)),
        }
    _A_in = _A_setup()

    def _B_setup():
        B, S, D, F = 1, 2048, 448, 1792
        return {
            "x": _w((lambda *s: torch.randn(*s, dtype=torch.bfloat16) * 0.05)(B, S, D)),
            "w1": _w((lambda *s: torch.randn(*s, dtype=torch.bfloat16) * 1.6)(D, F) * (D ** -0.5)),
            "b1": _w((lambda *s: torch.randn(*s, dtype=torch.bfloat16) * 1.6)(F) * 0.01),
            "w2": _w((lambda *s: torch.randn(*s, dtype=torch.bfloat16) * 1.6)(F, D) * (F ** -0.5)),
            "b2": _w((lambda *s: torch.randn(*s, dtype=torch.bfloat16) * 1.6)(D) * 0.01),
        }
    _B_in = _B_setup()

    return {
        "A_x": _A_in["x"],
        "A_wqkv": _A_in["wqkv"],
        "A_w_phi": _A_in["w_phi"],
        "A_wo": _A_in["wo"],
        "B_x": _B_in["x"],
        "B_w1": _B_in["w1"],
        "B_b1": _B_in["b1"],
        "B_w2": _B_in["w2"],
        "B_b2": _B_in["b2"],
    }

def reference(A_x, A_wqkv, A_w_phi, A_wo, B_x, B_w1, B_b1, B_w2, B_b2):
    def _A_ref(x, wqkv, w_phi, wo):
        B, S, D = x.shape
        H = 16; Dh = D // H
        qkv = (lambda x, *d: x.permute(*d))((x @ wqkv).reshape(B, S, 3, H, Dh), 2, 0, 3, 1, 4)
        q, k, v = qkv[0], qkv[1], qkv[2]
        pq = torch.einsum("bhsd,hdf->bhsf", q, w_phi)
        pk = torch.einsum("bhsd,hdf->bhsf", k, w_phi)
        phi_q = torch.concatenate([_softmax(pq, axis=-1), _softmax(-pq, axis=-1)], axis=-1)
        phi_k = torch.concatenate([_softmax(pk, axis=-1), _softmax(-pk, axis=-1)], axis=-1)
        kv = torch.einsum("bhsf,bhsd->bhfd", phi_k, v)
        z  = torch.einsum("bhsf->bhf", phi_k)
        num = torch.einsum("bhqf,bhfd->bhqd", phi_q, kv)
        den = torch.einsum("bhqf,bhf->bhq", phi_q, z)[..., None] + 1e-6
        o = num / den
        return (lambda x, *d: x.permute(*d))(o, 0, 2, 1, 3).reshape(B, S, D) @ wo

    def _B_ref(x, w1, b1, w2, b2):
        h = torch.einsum("bsd,df->bsf", x, w1) + b1
        h = _gelu(h)
        return torch.einsum("bsf,fd->bsd", h, w2) + b2

    x = A_x
    x = x + _A_ref(_layernorm(x, axis=-1), A_wqkv, A_w_phi, A_wo)
    x = x + _B_ref(_layernorm(x, axis=-1), B_w1, B_b1, B_w2, B_b2)
    x = x + _A_ref(_layernorm(x, axis=-1), A_wqkv, A_w_phi, A_wo)
    x = x + _B_ref(_layernorm(x, axis=-1), B_w1, B_b1, B_w2, B_b2)
    return x
```

```python
import struct, sys

NAME = "interleave_layers__linear_kernel_hedgehog__dense_activation_gelu__prompt"
S, D, H, DH, F = 2048, 448, 16, 28, 1792

WS_X1   = 0
WS_X2   = 2 << 20
WS_PHIQ = 4 << 20
WS_KVP  = 8 << 20
WS_O    = 10 << 20
WS_H    = 12 << 20
NXB = S * D * 2

def f2u(x):
    return "0x%08x" % struct.unpack("<I", struct.pack("<f", x))[0]

class Asm:
    def __init__(self):
        self.lines = []
        self.uid = 0
    def __call__(self, s):
        self.lines.append("    " + s)
    def label(self, s):
        self.lines.append(s + ":")
    def raw(self, s):
        self.lines.append(s)
    def nop(self, n):
        while n > 0:
            k = min(n, 16)
            self("s_nop %d" % (k - 1))
            n -= k
    def newlabel(self, p):
        self.uid += 1
        return "L_%s_%d" % (p, self.uid)

def vr(b, n):
    return "v[%d:%d]" % (b, b + n - 1)
def sr(b, n=4):
    return "s[%d:%d]" % (b, b + n - 1)

P_AX, P_WQKV, P_WPHI, P_WO, P_BX, P_W1, P_B1, P_W2, P_B2, P_OUT, P_DBG, P_WS = [16 + 2 * i for i in range(12)]

def prologue(a, name, nwg):
    a.raw(".p2align 8")
    a.raw(".type %s,@function" % name)
    a.label(name)
    a("s_cmp_ge_u32 s2, %d" % nwg)
    a("s_cbranch_scc1 %s_end" % name)
    a("s_load_dwordx16 s[16:31], s[0:1], 0")
    a("s_load_dwordx8 s[32:39], s[0:1], 64")
    a("v_and_b32 v1, 63, v0")
    a("v_lshrrev_b32 v2, 6, v0")
    a("v_and_b32 v3, 31, v0")
    a("v_readfirstlane_b32 s3, v2")
    a("v_lshrrev_b32 v4, 5, v1")
    a("s_waitcnt lgkmcnt(0)")

def epilogue(a, name):
    a.label("%s_end" % name)
    a("s_endpgm")

def srd(a, sd, ptr, size, off=0):
    if off:
        a("s_add_u32 s%d, s%d, 0x%x" % (sd, ptr, off))
        a("s_addc_u32 s%d, s%d, 0" % (sd + 1, ptr + 1))
    else:
        a("s_mov_b32 s%d, s%d" % (sd, ptr))
        a("s_mov_b32 s%d, s%d" % (sd + 1, ptr + 1))
    a("s_and_b32 s%d, s%d, 0xffff" % (sd + 1, sd + 1))
    a("s_mov_b32 s%d, 0x%x" % (sd + 2, size))
    a("s_mov_b32 s%d, 0x20000" % (sd + 3))

def xsrc_srd(a, sd, layer):
    if layer == 0:
        srd(a, sd, P_AX, NXB)
    else:
        srd(a, sd, P_WS, NXB, WS_X2)

def xhalf_sum(a, x, t):
    a("v_mov_b32 v%d, v%d" % (t, x))
    a.nop(2)
    a("v_permlane32_swap_b32 v%d, v%d" % (x, t))
    a.nop(1)
    a("v_add_f32 v%d, v%d, v%d" % (x, x, t))

def xhalf_op(a, op, x, t):
    a("v_mov_b32 v%d, v%d" % (t, x))
    a.nop(2)
    a("v_permlane32_swap_b32 v%d, v%d" % (x, t))
    a.nop(1)
    a("%s v%d, v%d, v%d" % (op, x, x, t))

def tr_addr(a, vd, t1, t2):
    a("v_and_b32 v%d, 15, v1" % t1)
    a("v_lshrrev_b32 v%d, 2, v%d" % (t2, t1))
    a("v_and_b32 v%d, 3, v%d" % (t1, t1))
    a("v_lshlrev_b32 v%d, 3, v%d" % (t1, t1))
    a("v_lshl_add_u32 v%d, v4, 3, v%d" % (t2, t2))
    a("v_lshl_add_u32 v%d, v%d, 6, v%d" % (vd, t2, t1))
    a("v_bfe_u32 v%d, v1, 4, 1" % t1)
    a("v_lshl_add_u32 v%d, v%d, 5, v%d" % (vd, t1, vd))

def dma_lane_off(a, vd, rowstride, t1):
    a("v_lshrrev_b32 v%d, 2, v1" % t1)
    a("v_mul_u32_u24 v%d, %d, v%d" % (vd, rowstride, t1))
    a("v_and_b32 v%d, 3, v1" % t1)
    a("v_lshl_add_u32 v%d, v%d, 4, v%d" % (vd, t1, vd))

def ln_stats(a, A0, vsum, vsq, vt, vmr, vrs):
    a("v_mov_b32 v%d, 0x3f803f80" % vt)
    a("v_mov_b32 v%d, 0" % vsum)
    a("v_mov_b32 v%d, 0" % vsq)
    for i in range(112):
        a("v_dot2_f32_bf16 v%d, v%d, v%d, v%d" % (vsum, A0 + i, vt, vsum))
        a("v_dot2_f32_bf16 v%d, v%d, v%d, v%d" % (vsq, A0 + i, A0 + i, vsq))
    a.nop(3)
    xhalf_sum(a, vsum, vt)
    xhalf_sum(a, vsq, vt)
    a("v_mul_f32 v%d, %s, v%d" % (vsum, f2u(1.0 / D), vsum))
    a("v_mul_f32 v%d, %s, v%d" % (vsq, f2u(1.0 / D), vsq))
    a("v_fma_f32 v%d, -v%d, v%d, v%d" % (vsq, vsum, vsum, vsq))
    a("v_max_f32 v%d, 0, v%d" % (vsq, vsq))
    a("v_add_f32 v%d, %s, v%d" % (vsq, f2u(1e-5), vsq))
    a("v_rsq_f32 v%d, v%d" % (vrs, vsq))
    a.nop(1)
    a("v_mul_f32 v%d, v%d, v%d" % (vmr, vsum, vrs))
    a("v_sub_f32 v%d, 0, v%d" % (vmr, vmr))

LOG2E = 1.4426950408889634

def gen_k1(a, layer):
    name = "k1l%d_kernel" % layer
    prologue(a, name, 256)
    a("s_and_b32 s4, s2, 7")
    a("s_lshr_b32 s5, s2, 3")
    a("s_lshl_b32 s4, s4, 1")
    a("s_and_b32 s6, s5, 1")
    a("s_add_u32 s4, s4, s6")
    a("s_lshr_b32 s5, s5, 1")
    xsrc_srd(a, 40, layer)
    srd(a, 44, P_WQKV, D * 3 * D * 2)
    srd(a, 48, P_WPHI, H * DH * DH * 2)
    srd(a, 52, P_WS, S * 2048, WS_PHIQ)
    srd(a, 56, P_WS, 16 * 16 * 8192, WS_KVP)
    A0 = 64; QA, KA, VA = 176, 192, 208; BF = 224
    a("s_lshl_b32 s6, s4, 7")
    a("s_lshl_b32 s7, s3, 5")
    a("s_add_u32 s6, s6, s7")
    a("v_add_u32 v5, s6, v3")
    a("v_mul_u32_u24 v6, 896, v5")
    a("v_lshl_add_u32 v6, v4, 4, v6")
    for s in range(28):
        a("buffer_load_dwordx4 %s, v6, s[40:43], 0 offen offset:%d" % (vr(A0 + 4 * s, 4), 32 * s))
    dma_lane_off(a, 7, 2688, 8)
    a("s_mul_i32 s8, s5, 56")
    a("s_mul_i32 s9, s3, %d" % (16 * 2688))
    a("s_add_u32 s8, s8, s9")
    a("s_lshl_b32 s10, s3, 10")
    for i in range(7):
        for t in range(3):
            a("s_add_u32 s11, s8, %d" % (i * 64 * 2688 + t * 896))
            a("s_add_u32 m0, s10, %d" % (i * 4096 + t * 28672))
            a.nop(1)
            a("buffer_load_dwordx4 v7, s[44:47], s11 offen lds")
    a("v_lshlrev_b32 v8, 1, v3")
    a("v_mul_u32_u24 v9, 224, v4")
    a("v_add_u32 v8, v8, v9")
    a("s_mul_i32 s12, s5, 1568")
    a("v_add_u32 v8, s12, v8")
    a("v_mov_b32 v10, 0x40000000")
    a("v_cmp_gt_u32 vcc, 28, v3")
    a.nop(2)
    a("v_cndmask_b32 v8, v10, v8, vcc")
    a("v_cmp_eq_u32 vcc, 0, v4")
    a.nop(2)
    a("v_cndmask_b32 v9, v10, v8, vcc")
    for s in range(2):
        for j in range(8):
            d0 = 16 * s + 8 * (j >> 2) + (j & 3)
            src = 9 if (s == 1 and j >= 4) else 8
            a("buffer_load_ushort v%d, v%d, s[48:51], 0 offen offset:%d" % (32 + 8 * s + j, src, d0 * 56))
    tr_addr(a, 11, 12, 13)
    a("v_add_u32 v10, 57344, v11")
    a("s_mov_b32 s60, 0")
    a("s_mov_b32 s61, -1")
    a("s_waitcnt vmcnt(37)")
    ln_stats(a, A0, 14, 15, 16, 17, 18)
    a("s_mul_i32 s13, s3, 5120")
    a("s_add_u32 s13, s13, 86016")
    a("v_lshlrev_b32 v12, 2, v3")
    a("v_add_u32 v12, s13, v12")
    a("ds_write_b32 v12, v18 offset:4096")
    a("ds_write_b32 v12, v17 offset:4224")
    a("v_mov_b32 v19, 0x3f803f80")
    for r in (20, 21, 22):
        a("v_mov_b32 v%d, 0" % r)
    a("s_waitcnt vmcnt(0)")
    for j in range(8):
        a("v_lshl_or_b32 v%d, v%d, 16, v%d" % (48 + j, 33 + 2 * j, 32 + 2 * j))
    a("s_barrier")
    def breads(step, setb):
        for t in range(3):
            base = BF + 12 * setb + 4 * t
            a("ds_read_b64_tr_b16 %s, v%d offset:%d" % (vr(base, 2), 11 - (t >> 1), (t & 1) * 28672 + step * 1024))
            a("ds_read_b64_tr_b16 %s, v%d offset:%d" % (vr(base + 2, 2), 11 - (t >> 1), (t & 1) * 28672 + step * 1024 + 256))
    breads(0, 0)
    for s in range(28):
        sb = s & 1
        if s + 1 < 28:
            breads(s + 1, sb ^ 1)
            a("s_waitcnt lgkmcnt(6)")
        else:
            a("s_waitcnt lgkmcnt(0)")
        b = BF + 12 * sb
        x = A0 + 4 * s
        c = "0" if s == 0 else None
        a("v_mfma_f32_32x32x16_bf16 %s, %s, %s, %s" % (vr(QA, 16), vr(b, 4), vr(x, 4), c or vr(QA, 16)))
        for j in range(4):
            a("v_dot2_f32_bf16 v20, v%d, v19, v20" % (b + j))
        a("v_mfma_f32_32x32x16_bf16 %s, %s, %s, %s" % (vr(KA, 16), vr(b + 4, 4), vr(x, 4), c or vr(KA, 16)))
        for j in range(4):
            a("v_dot2_f32_bf16 v21, v%d, v19, v21" % (b + 4 + j))
        a("v_mfma_f32_32x32x16_bf16 %s, %s, %s, %s" % (vr(VA, 16), vr(x, 4), vr(b + 8, 4), c or vr(VA, 16)))
        for j in range(4):
            a("v_dot2_f32_bf16 v22, v%d, v19, v22" % (b + 8 + j))
    a.nop(4)
    for r in (20, 21, 22):
        xhalf_sum(a, r, 12)
    a("v_lshlrev_b32 v12, 2, v3")
    a("v_add_u32 v12, s13, v12")
    a("ds_write_b32 v12, v20 offset:4352")
    a("ds_write_b32 v12, v21 offset:4480")
    a("v_lshlrev_b32 v13, 4, v4")
    a("v_add_u32 v13, s13, v13")
    a.nop(8)
    CS = 64
    PK = 80
    PQ = 96
    EP = 112
    EM = 128
    def feature_map(acc, csoff):
        for g in range(4):
            a("ds_read_b128 %s, v13 offset:%d" % (vr(CS + 4 * g, 4), csoff + 32 * g))
        a("s_waitcnt lgkmcnt(0)")
        for i in range(16):
            a("v_mul_f32 v%d, v17, v%d" % (CS + i, CS + i))
            a("v_fma_f32 v%d, v%d, v18, v%d" % (CS + i, acc + i, CS + i))
        for i in range(8):
            a("v_cvt_pk_bf16_f32 v%d, v%d, v%d" % (PK + i, CS + 2 * i, CS + 2 * i + 1))
        a.nop(2)
        a("v_mfma_f32_32x32x16_bf16 %s, %s, %s, 0" % (vr(PQ, 16), vr(48, 4), vr(PK, 4)))
        a("v_mfma_f32_32x32x16_bf16 %s, %s, %s, %s" % (vr(PQ, 16), vr(52, 4), vr(PK + 4, 4), vr(PQ, 16)))
        a.nop(16)
        for i in range(16):
            a("v_mul_f32 v%d, %s, v%d" % (PQ + i, f2u(LOG2E), PQ + i))
        a("v_mov_b32 v24, 0xff7fffff")
        a("v_mov_b32 v25, 0x7f7fffff")
        for i in range(4):
            a("v_cndmask_b32 v%d, v%d, v24, s[60:61]" % (26 + i, PQ + 12 + i))
            a("v_cndmask_b32 v%d, v%d, v25, s[60:61]" % (56 + i, PQ + 12 + i))
        a("v_max3_f32 v30, v%d, v%d, v%d" % (PQ, PQ + 1, PQ + 2))
        a("v_min3_f32 v31, v%d, v%d, v%d" % (PQ, PQ + 1, PQ + 2))
        for i in range(3, 11, 2):
            a("v_max3_f32 v30, v%d, v%d, v30" % (PQ + i, PQ + i + 1))
            a("v_min3_f32 v31, v%d, v%d, v31" % (PQ + i, PQ + i + 1))
        a("v_max_f32 v30, v%d, v30" % (PQ + 11))
        a("v_min_f32 v31, v%d, v31" % (PQ + 11))
        a("v_max3_f32 v30, v26, v27, v30")
        a("v_min3_f32 v31, v56, v57, v31")
        a("v_max3_f32 v30, v28, v29, v30")
        a("v_min3_f32 v31, v58, v59, v31")
        xhalf_op(a, "v_max_f32", 30, 12)
        xhalf_op(a, "v_min_f32", 31, 12)
        for i in range(16):
            a("v_sub_f32 v%d, v%d, v30" % (EP + i, PQ + i))
            a("v_sub_f32 v%d, v31, v%d" % (EM + i, PQ + i))
        for i in range(16):
            a("v_exp_f32 v%d, v%d" % (EP + i, EP + i))
            a("v_exp_f32 v%d, v%d" % (EM + i, EM + i))
        a.nop(1)
        a("v_mov_b32 v24, 0")
        for i in range(12, 16):
            a("v_cndmask_b32 v%d, v%d, v24, s[60:61]" % (EP + i, EP + i))
            a("v_cndmask_b32 v%d, v%d, v24, s[60:61]" % (EM + i, EM + i))
        a("v_add_f32 v30, v%d, v%d" % (EP, EP + 1))
        a("v_add_f32 v31, v%d, v%d" % (EM, EM + 1))
        for i in range(2, 16):
            a("v_add_f32 v30, v%d, v30" % (EP + i))
            a("v_add_f32 v31, v%d, v31" % (EM + i))
        xhalf_sum(a, 30, 12)
        xhalf_sum(a, 31, 12)
        a("v_rcp_f32 v30, v30")
        a("v_rcp_f32 v31, v31")
        a.nop(1)
        for i in range(16):
            a("v_mul_f32 v%d, v30, v%d" % (EP + i, EP + i))
            a("v_mul_f32 v%d, v31, v%d" % (EM + i, EM + i))
        for i in range(8):
            a("v_cvt_pk_bf16_f32 v%d, v%d, v%d" % (EP + i, EP + 2 * i, EP + 2 * i + 1))
            a("v_cvt_pk_bf16_f32 v%d, v%d, v%d" % (EM + i, EM + 2 * i, EM + 2 * i + 1))
    feature_map(QA, 4352)
    a("v_lshlrev_b32 v12, 11, v5")
    a("s_lshl_b32 s12, s5, 7")
    a("v_lshl_add_u32 v12, v4, 3, v12")
    a("v_add_u32 v12, s12, v12")
    for g in range(4):
        a("buffer_store_dwordx2 %s, v12, s[52:55], 0 offen offset:%d" % (vr(EP + 2 * g, 2), 16 * g))
        a("buffer_store_dwordx2 %s, v12, s[52:55], 0 offen offset:%d" % (vr(EM + 2 * g, 2), 64 + 16 * g))
    a.nop(2)
    feature_map(KA, 4480)
    a("v_lshlrev_b32 v12, 6, v3")
    a("v_lshl_add_u32 v12, v4, 3, v12")
    a("v_add_u32 v12, s13, v12")
    for g in range(4):
        a("ds_write_b64 v12, %s offset:%d" % (vr(EP + 2 * g, 2), 16 * g))
        a("ds_write_b64 v12, %s offset:%d" % (vr(EM + 2 * g, 2), 2048 + 16 * g))
    RS = 64; MR = 80
    for g in range(4):
        a("ds_read_b128 %s, v13 offset:%d" % (vr(RS + 4 * g, 4), 4096 + 32 * g))
        a("ds_read_b128 %s, v13 offset:%d" % (vr(MR + 4 * g, 4), 4224 + 32 * g))
    a("v_cmp_gt_u32 vcc, 28, v3")
    a("v_mov_b32 v24, 0")
    a("v_mov_b32 v25, 1.0")
    a("v_cmp_eq_u32 s[62:63], 28, v3")
    a.nop(2)
    a("v_cndmask_b32 v24, v24, v25, s[62:63]")
    a("s_waitcnt lgkmcnt(0)")
    for i in range(16):
        a("v_mul_f32 v%d, v22, v%d" % (MR + i, MR + i))
        a("v_fma_f32 v%d, v%d, v%d, v%d" % (MR + i, VA + i, RS + i, MR + i))
        a("v_cndmask_b32 v%d, v24, v%d, vcc" % (MR + i, MR + i))
    for i in range(8):
        a("v_cvt_pk_bf16_f32 v%d, v%d, v%d" % (PQ + i, MR + 2 * i, MR + 2 * i + 1))
    a("v_and_b32 v26, 15, v1")
    a("v_lshrrev_b32 v27, 2, v26")
    a("v_and_b32 v26, 3, v26")
    a("v_lshlrev_b32 v26, 3, v26")
    a("v_lshl_add_u32 v27, v4, 2, v27")
    a("v_lshl_add_u32 v26, v27, 6, v26")
    a("v_bfe_u32 v27, v1, 4, 1")
    a("v_lshl_add_u32 v26, v27, 5, v26")
    a("v_add_u32 v26, s13, v26")
    FA = 144
    for sg in range(2):
        for s in range(2):
            base = FA + 8 * sg + 4 * s
            a("ds_read_b64_tr_b16 %s, v26 offset:%d" % (vr(base, 2), sg * 2048 + s * 1024))
            a("ds_read_b64_tr_b16 %s, v26 offset:%d" % (vr(base + 2, 2), sg * 2048 + s * 1024 + 512))
    a("s_waitcnt lgkmcnt(0)")
    for sg in range(2):
        dst = QA if sg == 0 else KA
        a("v_mfma_f32_32x32x16_bf16 %s, %s, %s, 0" % (vr(dst, 16), vr(FA + 8 * sg, 4), vr(PQ, 4)))
        a("v_mfma_f32_32x32x16_bf16 %s, %s, %s, %s" % (vr(dst, 16), vr(FA + 8 * sg + 4, 4), vr(PQ + 4, 4), vr(dst, 16)))
    a.nop(16)
    a("s_barrier")
    a("v_lshlrev_b32 v12, 4, v1")
    a("s_lshl_b32 s12, s3, 13")
    a("v_add_u32 v12, s12, v12")
    for sg in range(2):
        src = QA if sg == 0 else KA
        for q in range(4):
            a("ds_write_b128 v12, %s offset:%d" % (vr(src + 4 * q, 4), sg * 4096 + q * 1024))
    a("s_waitcnt lgkmcnt(0)")
    a("s_barrier")
    a("v_lshlrev_b32 v12, 4, v0")
    for qq in range(2):
        for w in range(4):
            a("ds_read_b128 %s, v12 offset:%d" % (vr(64 + 16 * qq + 4 * w, 4), w * 8192 + qq * 4096))
    a("s_waitcnt lgkmcnt(0)")
    for qq in range(2):
        b = 64 + 16 * qq
        for e in range(4):
            a("v_add_f32 v%d, v%d, v%d" % (b + e, b + e, b + 4 + e))
            a("v_add_f32 v%d, v%d, v%d" % (b + 8 + e, b + 8 + e, b + 12 + e))
            a("v_add_f32 v%d, v%d, v%d" % (b + e, b + e, b + 8 + e))
    a("s_lshl_b32 s12, s5, 4")
    a("s_add_u32 s12, s12, s4")
    a("s_lshl_b32 s12, s12, 13")
    for qq in range(2):
        a("buffer_store_dwordx4 %s, v12, s[56:59], s12 offen offset:%d" % (vr(64 + 16 * qq, 4), qq * 4096 if qq * 4096 < 4096 else 0) if False else
          "buffer_store_dwordx4 %s, v12, s[56:59], s12 offen offset:%d" % (vr(64 + 16 * qq, 4), 0))
        if qq == 0:
            a("s_add_u32 s12, s12, 4096")
    epilogue(a, name)
    return name, 248, 106496

def gen_k2a(a, layer):
    name = "k2al%d_kernel" % layer
    prologue(a, name, 256)
    a("s_and_b32 s4, s2, 7")
    a("s_lshr_b32 s5, s2, 3")
    a("s_lshl_b32 s4, s4, 1")
    a("s_and_b32 s6, s5, 1")
    a("s_add_u32 s4, s4, s6")
    a("s_lshr_b32 s5, s5, 1")
    srd(a, 52, P_WS, S * 2048, WS_PHIQ)
    srd(a, 56, P_WS, 16 * 16 * 8192, WS_KVP)
    srd(a, 44, P_WS, NXB, WS_O)
    a("s_lshl_b32 s6, s4, 7")
    a("s_lshl_b32 s7, s3, 5")
    a("s_add_u32 s6, s6, s7")
    a("v_add_u32 v5, s6, v3")
    a("v_lshlrev_b32 v6, 11, v5")
    a("v_lshl_add_u32 v6, v4, 4, v6")
    a("s_lshl_b32 s7, s5, 7")
    for s in range(4):
        a("buffer_load_dwordx4 %s, v6, s[52:55], s7 offen offset:%d" % (vr(16 + 4 * s, 4), 32 * s))
    a("v_lshlrev_b32 v7, 4, v0")
    a("s_lshl_b32 s8, s5, 17")
    for r in range(16):
        for qq in range(2):
            a("s_add_u32 s9, s8, %d" % (r * 8192 + qq * 4096))
            a("buffer_load_dwordx4 %s, v7, s[56:59], s9 offen" % vr(64 + 8 * r + 4 * qq, 4))
    a("s_waitcnt vmcnt(0)")
    for e in range(8):
        for r in range(1, 16):
            a("v_add_f32 v%d, v%d, v%d" % (64 + e, 64 + e, 64 + 8 * r + e))
    a("v_cvt_pk_bf16_f32 v64, v64, v65")
    a("v_cvt_pk_bf16_f32 v65, v66, v67")
    a("v_cvt_pk_bf16_f32 v66, v68, v69")
    a("v_cvt_pk_bf16_f32 v67, v70, v71")
    a("v_mul_u32_u24 v8, 144, v3")
    a("v_lshl_add_u32 v8, v4, 3, v8")
    a("s_lshl_b32 s9, s3, 4")
    a("v_add_u32 v8, s9, v8")
    a("ds_write_b64 v8, v[64:65]")
    a("ds_write_b64 v8, v[66:67] offset:64")
    a("s_waitcnt lgkmcnt(0)")
    a("s_barrier")
    a("v_mul_u32_u24 v8, 144, v3")
    a("v_lshl_add_u32 v8, v4, 4, v8")
    for s in range(4):
        a("ds_read_b128 %s, v8 offset:%d" % (vr(32 + 4 * s, 4), 32 * s))
    a("s_waitcnt lgkmcnt(0)")
    for s in range(4):
        a("v_mfma_f32_32x32x16_bf16 v[64:79], %s, %s, %s" % (vr(32 + 4 * s, 4), vr(16 + 4 * s, 4), "0" if s == 0 else "v[64:79]"))
    a.nop(16)
    a("v_mov_b32 v9, v76")
    a("v_mov_b32 v10, v76")
    a.nop(2)
    a("v_permlane32_swap_b32 v9, v10")
    a.nop(1)
    a("v_add_f32 v10, %s, v10" % f2u(1e-6))
    a("v_rcp_f32 v10, v10")
    a.nop(1)
    for i in range(16):
        a("v_mul_f32 v%d, v10, v%d" % (64 + i, 64 + i))
    for i in range(8):
        a("v_cvt_pk_bf16_f32 v%d, v%d, v%d" % (64 + i, 64 + 2 * i, 64 + 2 * i + 1))
    a("v_mul_u32_u24 v11, 896, v5")
    a("v_lshl_add_u32 v11, v4, 3, v11")
    a("s_mul_i32 s9, s5, 56")
    for g in range(3):
        a("buffer_store_dwordx2 %s, v11, s[44:47], s9 offen offset:%d" % (vr(64 + 2 * g, 2), 16 * g))
    a("s_mov_b32 exec_hi, 0")
    a("buffer_store_dwordx2 v[70:71], v11, s[44:47], s9 offen offset:48")
    a("s_mov_b32 exec_hi, -1")
    epilogue(a, name)
    return name, 192, 32 * 144

def gen_k2(a, layer):
    name = "k2l%d_kernel" % layer
    prologue(a, name, 224)
    a("s_and_b32 s4, s2, 7")
    a("s_lshr_b32 s5, s2, 3")
    a("s_mul_hi_u32 s6, s5, 0x24924925")
    a("s_mul_i32 s7, s6, 7")
    a("s_sub_u32 s5, s5, s7")
    a("s_lshl_b32 s4, s4, 2")
    a("s_add_u32 s4, s4, s6")
    xsrc_srd(a, 40, layer)
    srd(a, 44, P_WO, D * D * 2)
    srd(a, 48, P_WS, NXB, WS_O)
    srd(a, 52, P_WS, NXB, WS_X1)
    A0 = 64; ACC = 176; BF = 192
    a("s_and_b32 s6, s3, 1")
    a("s_lshr_b32 s7, s3, 1")
    a("s_lshl_b32 s8, s4, 6")
    a("s_lshl_b32 s9, s6, 5")
    a("s_add_u32 s8, s8, s9")
    a("v_add_u32 v5, s8, v3")
    a("v_mul_u32_u24 v6, 896, v5")
    a("v_lshl_add_u32 v7, v4, 4, v6")
    for s in range(28):
        a("buffer_load_dwordx4 %s, v7, s[48:51], 0 offen offset:%d" % (vr(A0 + 4 * s, 4), 32 * s))
    dma_lane_off(a, 8, 896, 9)
    a("s_lshl_b32 s10, s5, 7")
    a("s_mul_i32 s11, s3, %d" % (16 * 896))
    a("s_add_u32 s10, s10, s11")
    a("s_lshl_b32 s11, s3, 10")
    for i in range(7):
        for t in range(2):
            a("s_add_u32 s12, s10, %d" % (i * 64 * 896 + t * 64))
            a("s_add_u32 m0, s11, %d" % (i * 4096 + t * 28672))
            a.nop(1)
            a("buffer_load_dwordx4 v8, s[44:47], s12 offen lds")
    a("s_lshl_b32 s12, s5, 7")
    a("s_lshl_b32 s13, s7, 6")
    a("s_add_u32 s12, s12, s13")
    a("v_lshl_add_u32 v9, v4, 3, v6")
    for g in range(4):
        a("buffer_load_dwordx2 %s, v9, s[40:43], s12 offen offset:%d" % (vr(32 + 2 * g, 2), 16 * g))
    tr_addr(a, 11, 12, 13)
    a("s_mul_i32 s13, s7, 28672")
    a("v_add_u32 v11, s13, v11")
    a("s_waitcnt vmcnt(0)")
    a("s_barrier")
    def breads(step, setb):
        base = BF + 4 * setb
        a("ds_read_b64_tr_b16 %s, v11 offset:%d" % (vr(base, 2), step * 1024))
        a("ds_read_b64_tr_b16 %s, v11 offset:%d" % (vr(base + 2, 2), step * 1024 + 256))
    NB = 4
    for s in range(NB - 1):
        breads(s, s)
    for s in range(28):
        if s + NB - 1 < 28:
            breads(s + NB - 1, (s + NB - 1) % NB)
            a("s_waitcnt lgkmcnt(%d)" % (2 * (NB - 1)))
        else:
            a("s_waitcnt lgkmcnt(%d)" % (2 * (27 - s)))
        a("v_mfma_f32_32x32x16_bf16 %s, %s, %s, %s" % (vr(ACC, 16), vr(BF + 4 * (s % NB), 4), vr(A0 + 4 * s, 4), "0" if s == 0 else vr(ACC, 16)))
    a.nop(16)
    for g in range(4):
        for e in range(2):
            src = 32 + 2 * g + e
            a("v_lshlrev_b32 v14, 16, v%d" % src)
            a("v_and_b32 v15, 0xffff0000, v%d" % src)
            a("v_add_f32 v%d, v%d, v14" % (ACC + 4 * g + 2 * e, ACC + 4 * g + 2 * e))
            a("v_add_f32 v%d, v%d, v15" % (ACC + 4 * g + 2 * e + 1, ACC + 4 * g + 2 * e + 1))
            a("v_cvt_pk_bf16_f32 v%d, v%d, v%d" % (src, ACC + 4 * g + 2 * e, ACC + 4 * g + 2 * e + 1))
    for g in range(4):
        a("buffer_store_dwordx2 %s, v9, s[52:55], s12 offen offset:%d" % (vr(32 + 2 * g, 2), 16 * g))
    epilogue(a, name)
    return name, 208, 2 * 28672

def gen_k3(a, layer):
    name = "k3l%d_kernel" % layer
    prologue(a, name, 224)
    a("s_and_b32 s4, s2, 7")
    a("s_lshr_b32 s5, s2, 3")
    a("s_lshr_b32 s6, s5, 1")
    a("s_and_b32 s5, s5, 1")
    a("s_lshl_b32 s4, s4, 1")
    a("s_add_u32 s4, s4, s5")
    a("s_mov_b32 s5, s6")
    srd(a, 40, P_WS, NXB, WS_X1)
    srd(a, 44, P_W1, D * F * 2)
    srd(a, 48, P_B1, F * 2)
    srd(a, 52, P_WS, S * F * 2, WS_H)
    A0 = 64; ACC = 176; BF = 208
    a("s_lshl_b32 s6, s4, 7")
    a("s_lshl_b32 s7, s3, 5")
    a("s_add_u32 s6, s6, s7")
    a("v_add_u32 v5, s6, v3")
    a("v_mul_u32_u24 v6, 896, v5")
    a("v_lshl_add_u32 v6, v4, 4, v6")
    for s in range(28):
        a("buffer_load_dwordx4 %s, v6, s[40:43], 0 offen offset:%d" % (vr(A0 + 4 * s, 4), 32 * s))
    dma_lane_off(a, 7, 3584, 8)
    a("s_lshl_b32 s8, s5, 8")
    a("s_mul_i32 s9, s3, %d" % (16 * 3584))
    a("s_add_u32 s8, s8, s9")
    a("s_lshl_b32 s10, s3, 10")
    for t in range(4):
        for i in range(7):
            a("s_add_u32 s11, s8, %d" % (i * 64 * 3584 + t * 64))
            a("s_add_u32 m0, s10, %d" % (i * 4096 + t * 28672))
            a.nop(1)
            a("buffer_load_dwordx4 v7, s[44:47], s11 offen lds")
    a("v_lshlrev_b32 v8, 3, v4")
    a("s_lshl_b32 s11, s5, 8")
    for t in range(4):
        for g in range(4):
            a("buffer_load_dwordx2 %s, v8, s[48:51], s11 offen offset:%d" % (vr(32 + 8 * t + 2 * g, 2), 64 * t + 16 * g))
    tr_addr(a, 11, 12, 13)
    a("v_add_u32 v10, 57344, v11")
    a("s_waitcnt vmcnt(44)")
    ln_stats(a, A0, 14, 15, 16, 17, 18)
    a("s_lshl_b32 s13, s3, 7")
    a("s_add_u32 s13, s13, 114688")
    a("v_lshlrev_b32 v12, 2, v3")
    a("v_add_u32 v12, s13, v12")
    a("v_lshlrev_b32 v13, 4, v4")
    a("v_add_u32 v13, s13, v13")
    a("v_mov_b32 v19, 0x3f803f80")
    a("v_mul_u32_u24 v9, 3584, v5")
    a("v_lshl_add_u32 v9, v4, 3, v9")
    a("v_mov_b32 v21, %s" % f2u(-2.0 * 0.7978845608028654 * LOG2E * 0.044715))
    a("s_waitcnt vmcnt(0)")
    a("s_barrier")
    C1 = -2.0 * 0.7978845608028654 * LOG2E
    NB = 4
    seq = [(t, s) for t in range(4) for s in range(28)]
    def breads(idx):
        t, s = seq[idx]
        base = BF + 4 * (idx % NB)
        a("ds_read_b64_tr_b16 %s, v%d offset:%d" % (vr(base, 2), 11 - (t >> 1), (t & 1) * 28672 + s * 1024))
        a("ds_read_b64_tr_b16 %s, v%d offset:%d" % (vr(base + 2, 2), 11 - (t >> 1), (t & 1) * 28672 + s * 1024 + 256))
    CSR = 224
    def epi_ops(t):
        ops = []
        acc = ACC + 16 * (t & 1)
        for i in range(16):
            g, e = i >> 2, i & 3
            braw = 32 + 8 * t + 2 * g + (e >> 1)
            x = acc + i
            if e & 1:
                ops.append("v_and_b32 v22, 0xffff0000, v%d" % braw)
            else:
                ops.append("v_lshlrev_b32 v22, 16, v%d" % braw)
            ops.append("v_fma_f32 v22, v%d, v17, v22" % (CSR + i))
            ops.append("v_fma_f32 v%d, v%d, v18, v22" % (x, x))
            ops.append("v_mul_f32 v22, v%d, v%d" % (x, x))
            ops.append("v_fmaak_f32 v22, v21, v22, %s" % f2u(C1))
            ops.append("v_mul_f32 v22, v%d, v22" % x)
            ops.append("v_exp_f32 v22, v22")
            ops.append("v_add_f32 v22, 1.0, v22" if False else "s_nop 0")
            ops.append("v_add_f32 v22, 1.0, v22")
            ops.append("v_rcp_f32 v22, v22")
            ops.append("s_nop 0")
            ops.append("v_mul_f32 v%d, v%d, v22" % (x, x))
        for i in range(8):
            ops.append("v_cvt_pk_bf16_f32 v%d, v%d, v%d" % (acc + i, acc + 2 * i, acc + 2 * i + 1))
        for g in range(4):
            ops.append("buffer_store_dwordx2 %s, v9, s[52:55], s11 offen offset:%d" % (vr(acc + 2 * g, 2), 64 * t + 16 * g))
        return ops
    for i in range(NB - 1):
        breads(i)
    pending = []
    for idx, (t, s) in enumerate(seq):
        if s == 0:
            a("v_mov_b32 v20, 0")
        nlg = 0
        if idx + NB - 1 < len(seq):
            breads(idx + NB - 1)
            a("s_waitcnt lgkmcnt(%d)" % (2 * (NB - 1)))
        else:
            a("s_waitcnt lgkmcnt(%d)" % (2 * (len(seq) - 1 - idx)))
        b = BF + 4 * (idx % NB)
        acc = ACC + 16 * (t & 1)
        a("v_mfma_f32_32x32x16_bf16 %s, %s, %s, %s" % (vr(acc, 16), vr(b, 4), vr(A0 + 4 * s, 4), "0" if s == 0 else vr(acc, 16)))
        for j in range(4):
            a("v_dot2_f32_bf16 v20, v%d, v19, v20" % (b + j))
        if pending and s >= 2:
            n = min(len(pending), 9)
            for o in pending[:n]:
                a(o)
            pending = pending[n:]
        if s == 27:
            assert not pending
            a.nop(4)
            xhalf_sum(a, 20, 23)
            a("ds_write_b32 v12, v20")
            a("s_waitcnt lgkmcnt(0)")
            for g in range(4):
                a("ds_read_b128 %s, v13 offset:%d" % (vr(CSR + 4 * g, 4), 32 * g))
            a("s_waitcnt lgkmcnt(0)")
            pending = epi_ops(t)
            if t == 3:
                a.nop(16)
                for o in pending:
                    a(o)
                pending = []
    epilogue(a, name)
    return name, 240, 114688 + 512

def gen_k4(a, layer):
    name = "k4l%d_kernel" % layer
    prologue(a, name, 224)
    a("s_and_b32 s4, s2, 7")
    a("s_lshr_b32 s5, s2, 3")
    a("s_mul_hi_u32 s6, s5, 0x24924925")
    a("s_mul_i32 s7, s6, 7")
    a("s_sub_u32 s5, s5, s7")
    a("s_lshl_b32 s4, s4, 2")
    a("s_add_u32 s4, s4, s6")
    srd(a, 40, P_WS, S * F * 2, WS_H)
    srd(a, 44, P_W2, F * D * 2)
    srd(a, 48, P_WS, NXB, WS_X1)
    if layer == 0:
        srd(a, 52, P_WS, NXB, WS_X2)
    else:
        srd(a, 52, P_OUT, NXB)
    srd(a, 56, P_B2, D * 2)
    ACC = 64; FR = 80
    a("s_and_b32 s6, s3, 1")
    a("s_lshr_b32 s7, s3, 1")
    a("v_lshrrev_b32 v6, 3, v1")
    a("v_and_b32 v7, 7, v1")
    a("v_xor_b32 v7, v7, v6")
    a("v_mul_u32_u24 v8, 3584, v6")
    a("v_lshl_add_u32 v8, v7, 4, v8")
    a("s_lshl_b32 s8, s4, 6")
    a("s_lshl_b32 s9, s3, 4")
    a("s_add_u32 s8, s8, s9")
    a("s_mul_i32 s8, s8, 3584")
    dma_lane_off(a, 9, 896, 10)
    a("s_lshl_b32 s10, s5, 7")
    a("s_mul_i32 s11, s3, %d" % (16 * 896))
    a("s_add_u32 s10, s10, s11")
    a("s_lshl_b32 s12, s3, 11")
    a("s_lshl_b32 s13, s3, 10")
    def dma(stage):
        slot = (stage % 4) * 16384
        for i in range(2):
            a("s_add_u32 s14, s8, %d" % (stage * 128 + i * 8 * 3584))
            a("s_add_u32 m0, s12, %d" % (slot + i * 1024))
            a.nop(1)
            a("buffer_load_dwordx4 v8, s[40:43], s14 offen lds")
        for t in range(2):
            a("s_add_u32 s14, s10, %d" % (stage * 64 * 896 + t * 64))
            a("s_add_u32 m0, s13, %d" % (slot + 8192 + t * 4096))
            a.nop(1)
            a("buffer_load_dwordx4 v9, s[44:47], s14 offen lds")
    for st in range(3):
        dma(st)
    a("s_lshl_b32 s14, s4, 6")
    a("s_lshl_b32 s15, s6, 5")
    a("s_add_u32 s14, s14, s15")
    a("v_add_u32 v5, s14, v3")
    a("v_mul_u32_u24 v10, 896, v5")
    a("v_lshl_add_u32 v10, v4, 3, v10")
    a("s_lshl_b32 s60, s5, 7")
    a("s_lshl_b32 s61, s7, 6")
    a("s_add_u32 s60, s60, s61")
    for g in range(4):
        a("buffer_load_dwordx2 %s, v10, s[48:51], s60 offen offset:%d" % (vr(32 + 2 * g, 2), 16 * g))
    a("v_lshlrev_b32 v12, 3, v4")
    for g in range(4):
        a("buffer_load_dwordx2 %s, v12, s[56:59], s60 offen offset:%d" % (vr(40 + 2 * g, 2), 16 * g))
    a("s_lshl_b32 s15, s6, 5")
    a("v_add_u32 v17, s15, v3")
    a("v_and_b32 v18, 7, v3")
    for ks in range(4):
        a("v_or_b32 v19, %d, v4" % (2 * ks))
        a("v_xor_b32 v19, v19, v18")
        a("v_lshlrev_b32 v19, 4, v19")
        a("v_lshl_add_u32 v%d, v17, 7, v19" % (13 + ks))
    tr_addr(a, 11, 19, 20)
    a("s_lshl_b32 s15, s7, 12")
    a("s_add_u32 s15, s15, 8192")
    a("v_add_u32 v11, s15, v11")
    for st in range(28):
        slot = (st % 4) * 16384
        if st <= 2:
            n = 4 * (2 - st) + 8
        else:
            n = 4 * min(2, 27 - st)
        a("s_waitcnt vmcnt(%d)" % n)
        a("s_barrier")
        if st + 3 < 28:
            dma(st + 3)
        for ks in range(4):
            a("ds_read_b128 %s, v%d offset:%d" % (vr(FR + 8 * ks, 4), 13 + ks, slot))
            a("ds_read_b64_tr_b16 %s, v11 offset:%d" % (vr(FR + 8 * ks + 4, 2), slot + ks * 1024))
            a("ds_read_b64_tr_b16 %s, v11 offset:%d" % (vr(FR + 8 * ks + 6, 2), slot + ks * 1024 + 256))
        for ks in range(4):
            a("s_waitcnt lgkmcnt(%d)" % (3 * (3 - ks)))
            a("v_mfma_f32_32x32x16_bf16 %s, %s, %s, %s" % (vr(ACC, 16), vr(FR + 8 * ks + 4, 4), vr(FR + 8 * ks, 4), "0" if (st == 0 and ks == 0) else vr(ACC, 16)))
    a.nop(16)
    for g in range(4):
        for e in range(2):
            src = 32 + 2 * g + e
            bsrc = 40 + 2 * g + e
            i0 = ACC + 4 * g + 2 * e
            a("v_lshlrev_b32 v20, 16, v%d" % src)
            a("v_and_b32 v21, 0xffff0000, v%d" % src)
            a("v_lshlrev_b32 v22, 16, v%d" % bsrc)
            a("v_and_b32 v23, 0xffff0000, v%d" % bsrc)
            a("v_add_f32 v%d, v%d, v22" % (i0, i0))
            a("v_add_f32 v%d, v%d, v23" % (i0 + 1, i0 + 1))
            a("v_add_f32 v%d, v%d, v20" % (i0, i0))
            a("v_add_f32 v%d, v%d, v21" % (i0 + 1, i0 + 1))
            a("v_cvt_pk_bf16_f32 v%d, v%d, v%d" % (src, i0, i0 + 1))
    for g in range(4):
        a("buffer_store_dwordx2 %s, v10, s[52:55], s60 offen offset:%d" % (vr(32 + 2 * g, 2), 16 * g))
    epilogue(a, name)
    return name, 112, 65536

def main():
    a = Asm()
    ks = []
    for layer in range(2):
        ks.append(gen_k1(a, layer) + (256,))
        ks.append(gen_k2a(a, layer) + (256,))
        ks.append(gen_k2(a, layer) + (224,))
        ks.append(gen_k3(a, layer) + (224,))
        ks.append(gen_k4(a, layer) + (224,))
    hdr = open("cdna_kernels/%s.s.ref" % NAME).read().split("\n")
    out = [l for l in hdr[:13]]
    for (n, nv, lds, g) in ks:
        out.append("; @launch kernel=%s grid=(%d,1,1) block=(256,1,1) lds=%d" % (n, g, lds))
    out.append('.amdgcn_target "amdgcn-amd-amdhsa--gfx950"')
    out.append(".text")
    for (n, nv, lds, g) in ks:
        out.append(".globl %s" % n)
    out += a.lines
    out.append('.section .rodata,"a"')
    for (n, nv, lds, g) in ks:
        out.append(".p2align 6")
        out.append(".amdhsa_kernel %s" % n)
        out.append("  .amdhsa_next_free_vgpr %d" % nv)
        out.append("  .amdhsa_next_free_sgpr 72")
        out.append("  .amdhsa_accum_offset %d" % ((nv + 3) // 4 * 4))
        out.append("  .amdhsa_group_segment_fixed_size 0")
        out.append("  .amdhsa_kernarg_size 96")
        out.append("  .amdhsa_user_sgpr_count 2")
        out.append("  .amdhsa_user_sgpr_kernarg_segment_ptr 1")
        out.append("  .amdhsa_system_sgpr_workgroup_id_x 1")
        out.append(".end_amdhsa_kernel")
    dst = sys.argv[1] if len(sys.argv) > 1 else "cdna_kernels/%s.s" % NAME
    open(dst, "w").write("\n".join(out) + "\n")

main()
```

```python
import struct, sys, os
STAMP = os.environ.get('STAMP', '')

NAME = "interleave_layers__linear_kernel_hedgehog__dense_activation_gelu__prompt"
S, D, H, DH, F = 2048, 448, 16, 28, 1792

WS_X1   = 0
WS_X2   = 2 << 20
WS_PHIQ = 4 << 20
WS_KVP  = 8 << 20
WS_O    = 10 << 20
WS_H    = 12 << 20
NXB = S * D * 2

def f2u(x):
    return "0x%08x" % struct.unpack("<I", struct.pack("<f", x))[0]

class Asm:
    def __init__(self):
        self.lines = []
        self.uid = 0
    def __call__(self, s):
        if s.startswith("buffer_") and "offset:" in s:
            import re
            assert int(re.search(r"offset:(\d+)", s).group(1)) < 4096, s
        self.lines.append("    " + s)
    def label(self, s):
        self.lines.append(s + ":")
    def raw(self, s):
        self.lines.append(s)
    def nop(self, n):
        while n > 0:
            k = min(n, 16)
            self("s_nop %d" % (k - 1))
            n -= k
    def newlabel(self, p):
        self.uid += 1
        return "L_%s_%d" % (p, self.uid)

def vr(b, n):
    return "v[%d:%d]" % (b, b + n - 1)
def sr(b, n=4):
    return "s[%d:%d]" % (b, b + n - 1)

P_AX, P_WQKV, P_WPHI, P_WO, P_BX, P_W1, P_B1, P_W2, P_B2, P_OUT, P_DBG, P_WS = [16 + 2 * i for i in range(12)]

def prologue(a, name, nwg):
    a.raw(".p2align 8")
    a.raw(".type %s,@function" % name)
    a.label(name)
    a("s_cmp_ge_u32 s2, %d" % nwg)
    a("s_cbranch_scc1 %s_end" % name)
    a("s_load_dwordx16 s[16:31], s[0:1], 0")
    a("s_load_dwordx8 s[32:39], s[0:1], 64")
    a("v_and_b32 v1, 63, v0")
    a("v_lshrrev_b32 v2, 6, v0")
    a("v_and_b32 v3, 31, v0")
    a("v_readfirstlane_b32 s3, v2")
    a("v_lshrrev_b32 v4, 5, v1")
    if STAMP and name.startswith(STAMP):
        a("s_memtime s[66:67]")
    a("s_waitcnt lgkmcnt(0)")
    if STAMP and name.startswith(STAMP):
        for i in range(16): a("s_mov_b32 s%d, 0" % (82 + i))
        a("s_mov_b32 s96, s66")
        stamp(a, name, 0)

import os
STAMP = os.environ.get("STAMP", "")
def stamp(a, name, idx):
    if STAMP and name.startswith(STAMP):
        a("s_memtime s[80:81]")
        a("s_waitcnt lgkmcnt(0)")
        a("s_mov_b32 s%d, s80" % (82 + idx))

def epilogue(a, name):
    if STAMP and name.startswith(STAMP):
        stamp(a, name, 15)
        srd(a, 64, P_WS, 1 << 20, 200 << 20)
        a("s_lshl_b32 s68, s2, 2")
        a("s_add_u32 s68, s68, s3")
        a("s_lshl_b32 s68, s68, 6")
        a("v_mov_b32 v1, 0")
        for i in range(16):
            a("v_mov_b32 v2, s%d" % (82 + i))
            a("buffer_store_dword v2, v1, s[64:67], s68 offen offset:%d" % (4 * i))
            a.nop(1)
    a.label("%s_end" % name)
    a("s_endpgm")

def srd(a, sd, ptr, size, off=0):
    if off:
        a("s_add_u32 s%d, s%d, 0x%x" % (sd, ptr, off))
        a("s_addc_u32 s%d, s%d, 0" % (sd + 1, ptr + 1))
    else:
        a("s_mov_b32 s%d, s%d" % (sd, ptr))
        a("s_mov_b32 s%d, s%d" % (sd + 1, ptr + 1))
    a("s_and_b32 s%d, s%d, 0xffff" % (sd + 1, sd + 1))
    a("s_mov_b32 s%d, 0x%x" % (sd + 2, size))
    a("s_mov_b32 s%d, 0x20000" % (sd + 3))

def xsrc_srd(a, sd, layer):
    if layer == 0:
        srd(a, sd, P_AX, NXB)
    else:
        srd(a, sd, P_WS, NXB, WS_X2)

def xhalf_sum(a, x, t):
    a("v_mov_b32 v%d, v%d" % (t, x))
    a.nop(2)
    a("v_permlane32_swap_b32 v%d, v%d" % (x, t))
    a.nop(1)
    a("v_add_f32 v%d, v%d, v%d" % (x, x, t))

def xhalf_op(a, op, x, t):
    a("v_mov_b32 v%d, v%d" % (t, x))
    a.nop(2)
    a("v_permlane32_swap_b32 v%d, v%d" % (x, t))
    a.nop(1)
    a("%s v%d, v%d, v%d" % (op, x, x, t))

def tr_addr(a, vd, t1, t2):
    a("v_and_b32 v%d, 15, v1" % t1)
    a("v_lshrrev_b32 v%d, 2, v%d" % (t2, t1))
    a("v_and_b32 v%d, 3, v%d" % (t1, t1))
    a("v_lshlrev_b32 v%d, 3, v%d" % (t1, t1))
    a("v_lshl_add_u32 v%d, v4, 3, v%d" % (t2, t2))
    a("v_lshl_add_u32 v%d, v%d, 6, v%d" % (vd, t2, t1))
    a("v_bfe_u32 v%d, v1, 4, 1" % t1)
    a("v_lshl_add_u32 v%d, v%d, 5, v%d" % (vd, t1, vd))

def dma_lane_off(a, vd, rowstride, t1):
    a("v_lshrrev_b32 v%d, 2, v1" % t1)
    a("v_mul_u32_u24 v%d, %d, v%d" % (vd, rowstride, t1))
    a("v_and_b32 v%d, 3, v1" % t1)
    a("v_lshl_add_u32 v%d, v%d, 4, v%d" % (vd, t1, vd))

def ln_stats(a, A0, vsum, vsq, vt, vmr, vrs):
    a("v_mov_b32 v%d, 0x3f803f80" % vt)
    a("v_mov_b32 v%d, 0" % vsum)
    a("v_mov_b32 v%d, 0" % vsq)
    for i in range(112):
        a("v_dot2_f32_bf16 v%d, v%d, v%d, v%d" % (vsum, A0 + i, vt, vsum))
        a("v_dot2_f32_bf16 v%d, v%d, v%d, v%d" % (vsq, A0 + i, A0 + i, vsq))
    a.nop(3)
    xhalf_sum(a, vsum, vt)
    xhalf_sum(a, vsq, vt)
    a("v_mul_f32 v%d, %s, v%d" % (vsum, f2u(1.0 / D), vsum))
    a("v_mul_f32 v%d, %s, v%d" % (vsq, f2u(1.0 / D), vsq))
    a("v_fma_f32 v%d, -v%d, v%d, v%d" % (vsq, vsum, vsum, vsq))
    a("v_max_f32 v%d, 0, v%d" % (vsq, vsq))
    a("v_add_f32 v%d, %s, v%d" % (vsq, f2u(1e-5), vsq))
    a("v_rsq_f32 v%d, v%d" % (vrs, vsq))
    a.nop(1)
    a("v_mul_f32 v%d, v%d, v%d" % (vmr, vsum, vrs))
    a("v_sub_f32 v%d, 0, v%d" % (vmr, vmr))

LOG2E = 1.4426950408889634

def gen_k1(a, layer):
    name = "k1l%d_kernel" % layer
    prologue(a, name, 256)
    a("s_and_b32 s4, s2, 7")
    a("s_lshr_b32 s5, s2, 3")
    a("s_lshl_b32 s4, s4, 1")
    a("s_and_b32 s6, s5, 1")
    a("s_add_u32 s4, s4, s6")
    a("s_lshr_b32 s5, s5, 1")
    xsrc_srd(a, 40, layer)
    srd(a, 44, P_WQKV, D * 3 * D * 2)
    srd(a, 48, P_WPHI, H * DH * DH * 2)
    srd(a, 52, P_WS, S * 2048, WS_PHIQ)
    srd(a, 56, P_WS, 16 * 16 * 8192, WS_KVP)
    A0 = 64; QA, KA, VA = 176, 192, 208; BF = 224
    a("s_lshl_b32 s6, s4, 7")
    a("s_lshl_b32 s7, s3, 5")
    a("s_add_u32 s6, s6, s7")
    a("v_add_u32 v5, s6, v3")
    a("v_mul_u32_u24 v6, 896, v5")
    a("v_lshl_add_u32 v6, v4, 4, v6")
    for s in range(28):
        a("buffer_load_dwordx4 %s, v6, s[40:43], 0 offen offset:%d" % (vr(A0 + 4 * s, 4), 32 * s))
    stamp(a, name, 10)
    dma_lane_off(a, 7, 2688, 8)
    a("s_mul_i32 s8, s5, 56")
    a("s_mul_i32 s9, s3, %d" % (16 * 2688))
    a("s_add_u32 s8, s8, s9")
    a("s_lshl_b32 s10, s3, 10")
    for i in range(7):
        for t in range(3):
            a("s_add_u32 s11, s8, %d" % (i * 64 * 2688 + t * 896))
            a("s_add_u32 m0, s10, %d" % (i * 4096 + t * 28672))
            a.nop(1)
            a("buffer_load_dwordx4 v7, s[44:47], s11 offen lds")
    stamp(a, name, 11)
    a("v_lshlrev_b32 v8, 1, v3")
    a("v_mul_u32_u24 v9, 224, v4")
    a("v_add_u32 v8, v8, v9")
    a("s_mul_i32 s12, s5, 1568")
    a("v_add_u32 v8, s12, v8")
    a("v_mov_b32 v10, 0x40000000")
    a("v_cmp_gt_u32 vcc, 28, v3")
    a.nop(2)
    a("v_cndmask_b32 v8, v10, v8, vcc")
    a("v_cmp_eq_u32 vcc, 0, v4")
    a.nop(2)
    a("v_cndmask_b32 v9, v10, v8, vcc")
    for s in range(2):
        for j in range(8):
            d0 = 16 * s + 8 * (j >> 2) + (j & 3)
            src = 9 if (s == 1 and j >= 4) else 8
            a("buffer_load_ushort v%d, v%d, s[48:51], 0 offen offset:%d" % (32 + 8 * s + j, src, d0 * 56))
    tr_addr(a, 11, 12, 13)
    a("v_add_u32 v10, 57344, v11")
    a("s_mov_b32 s60, 0")
    a("s_mov_b32 s61, -1")
    stamp(a, name, 1)
    a("s_waitcnt vmcnt(37)")
    stamp(a, name, 2)
    ln_stats(a, A0, 14, 15, 16, 17, 18)
    a("s_mul_i32 s13, s3, 5120")
    a("s_add_u32 s13, s13, 86016")
    a("v_lshlrev_b32 v12, 2, v3")
    a("v_add_u32 v12, s13, v12")
    a("ds_write_b32 v12, v18 offset:4096")
    a("ds_write_b32 v12, v17 offset:4224")
    a("v_mov_b32 v19, 0x3f803f80")
    for r in (20, 21, 22):
        a("v_mov_b32 v%d, 0" % r)
    stamp(a, name, 3)
    a("s_waitcnt vmcnt(0)")
    stamp(a, name, 4)
    for j in range(8):
        a("v_lshl_or_b32 v%d, v%d, 16, v%d" % (48 + j, 33 + 2 * j, 32 + 2 * j))
    a("s_barrier")
    stamp(a, name, 5)
    def breads(step, setb):
        for t in range(3):
            base = BF + 12 * setb + 4 * t
            a("ds_read_b64_tr_b16 %s, v%d offset:%d" % (vr(base, 2), 11 - (t >> 1), (t & 1) * 28672 + step * 1024))
            a("ds_read_b64_tr_b16 %s, v%d offset:%d" % (vr(base + 2, 2), 11 - (t >> 1), (t & 1) * 28672 + step * 1024 + 256))
    breads(0, 0)
    for s in range(28):
        sb = s & 1
        if s + 1 < 28:
            breads(s + 1, sb ^ 1)
            a("s_waitcnt lgkmcnt(6)")
        else:
            a("s_waitcnt lgkmcnt(0)")
        b = BF + 12 * sb
        x = A0 + 4 * s
        c = "0" if s == 0 else None
        a("v_mfma_f32_32x32x16_bf16 %s, %s, %s, %s" % (vr(QA, 16), vr(b, 4), vr(x, 4), c or vr(QA, 16)))
        for j in range(4):
            a("v_dot2_f32_bf16 v20, v%d, v19, v20" % (b + j))
        a("v_mfma_f32_32x32x16_bf16 %s, %s, %s, %s" % (vr(KA, 16), vr(b + 4, 4), vr(x, 4), c or vr(KA, 16)))
        for j in range(4):
            a("v_dot2_f32_bf16 v21, v%d, v19, v21" % (b + 4 + j))
        a("v_mfma_f32_32x32x16_bf16 %s, %s, %s, %s" % (vr(VA, 16), vr(x, 4), vr(b + 8, 4), c or vr(VA, 16)))
        for j in range(4):
            a("v_dot2_f32_bf16 v22, v%d, v19, v22" % (b + 8 + j))
    a.nop(4)
    stamp(a, name, 6)
    for r in (20, 21, 22):
        xhalf_sum(a, r, 12)
    a("v_lshlrev_b32 v12, 2, v3")
    a("v_add_u32 v12, s13, v12")
    a("ds_write_b32 v12, v20 offset:4352")
    a("ds_write_b32 v12, v21 offset:4480")
    a("v_lshlrev_b32 v13, 4, v4")
    a("v_add_u32 v13, s13, v13")
    a.nop(8)
    CS = 64
    PK = 80
    PQ = 96
    EP = 112
    EM = 128
    def feature_map(acc, csoff):
        for g in range(4):
            a("ds_read_b128 %s, v13 offset:%d" % (vr(CS + 4 * g, 4), csoff + 32 * g))
        a("s_waitcnt lgkmcnt(0)")
        for i in range(16):
            a("v_mul_f32 v%d, v17, v%d" % (CS + i, CS + i))
            a("v_fma_f32 v%d, v%d, v18, v%d" % (CS + i, acc + i, CS + i))
        for i in range(8):
            a("v_cvt_pk_bf16_f32 v%d, v%d, v%d" % (PK + i, CS + 2 * i, CS + 2 * i + 1))
        a.nop(2)
        a("v_mfma_f32_32x32x16_bf16 %s, %s, %s, 0" % (vr(PQ, 16), vr(48, 4), vr(PK, 4)))
        a("v_mfma_f32_32x32x16_bf16 %s, %s, %s, %s" % (vr(PQ, 16), vr(52, 4), vr(PK + 4, 4), vr(PQ, 16)))
        a.nop(16)
        for i in range(16):
            a("v_mul_f32 v%d, %s, v%d" % (PQ + i, f2u(LOG2E), PQ + i))
        a("v_mov_b32 v24, 0xff7fffff")
        a("v_mov_b32 v25, 0x7f7fffff")
        for i in range(4):
            a("v_cndmask_b32 v%d, v%d, v24, s[60:61]" % (26 + i, PQ + 12 + i))
            a("v_cndmask_b32 v%d, v%d, v25, s[60:61]" % (56 + i, PQ + 12 + i))
        a("v_max3_f32 v30, v%d, v%d, v%d" % (PQ, PQ + 1, PQ + 2))
        a("v_min3_f32 v31, v%d, v%d, v%d" % (PQ, PQ + 1, PQ + 2))
        for i in range(3, 11, 2):
            a("v_max3_f32 v30, v%d, v%d, v30" % (PQ + i, PQ + i + 1))
            a("v_min3_f32 v31, v%d, v%d, v31" % (PQ + i, PQ + i + 1))
        a("v_max_f32 v30, v%d, v30" % (PQ + 11))
        a("v_min_f32 v31, v%d, v31" % (PQ + 11))
        a("v_max3_f32 v30, v26, v27, v30")
        a("v_min3_f32 v31, v56, v57, v31")
        a("v_max3_f32 v30, v28, v29, v30")
        a("v_min3_f32 v31, v58, v59, v31")
        xhalf_op(a, "v_max_f32", 30, 12)
        xhalf_op(a, "v_min_f32", 31, 12)
        for i in range(16):
            a("v_sub_f32 v%d, v%d, v30" % (EP + i, PQ + i))
            a("v_sub_f32 v%d, v31, v%d" % (EM + i, PQ + i))
        for i in range(16):
            a("v_exp_f32 v%d, v%d" % (EP + i, EP + i))
            a("v_exp_f32 v%d, v%d" % (EM + i, EM + i))
        a.nop(1)
        a("v_mov_b32 v24, 0")
        for i in range(12, 16):
            a("v_cndmask_b32 v%d, v%d, v24, s[60:61]" % (EP + i, EP + i))
            a("v_cndmask_b32 v%d, v%d, v24, s[60:61]" % (EM + i, EM + i))
        a("v_add_f32 v30, v%d, v%d" % (EP, EP + 1))
        a("v_add_f32 v31, v%d, v%d" % (EM, EM + 1))
        for i in range(2, 16):
            a("v_add_f32 v30, v%d, v30" % (EP + i))
            a("v_add_f32 v31, v%d, v31" % (EM + i))
        xhalf_sum(a, 30, 12)
        xhalf_sum(a, 31, 12)
        a("v_rcp_f32 v30, v30")
        a("v_rcp_f32 v31, v31")
        a.nop(1)
        for i in range(16):
            a("v_mul_f32 v%d, v30, v%d" % (EP + i, EP + i))
            a("v_mul_f32 v%d, v31, v%d" % (EM + i, EM + i))
        for i in range(8):
            a("v_cvt_pk_bf16_f32 v%d, v%d, v%d" % (EP + i, EP + 2 * i, EP + 2 * i + 1))
            a("v_cvt_pk_bf16_f32 v%d, v%d, v%d" % (EM + i, EM + 2 * i, EM + 2 * i + 1))
    feature_map(QA, 4352)
    a("v_lshlrev_b32 v12, 11, v5")
    a("s_lshl_b32 s12, s5, 7")
    a("v_lshl_add_u32 v12, v4, 3, v12")
    a("v_add_u32 v12, s12, v12")
    for g in range(4):
        a("buffer_store_dwordx2 %s, v12, s[52:55], 0 offen offset:%d" % (vr(EP + 2 * g, 2), 16 * g))
        a("buffer_store_dwordx2 %s, v12, s[52:55], 0 offen offset:%d" % (vr(EM + 2 * g, 2), 64 + 16 * g))
    a.nop(2)
    stamp(a, name, 7)
    feature_map(KA, 4480)
    a("v_lshlrev_b32 v12, 6, v3")
    a("v_lshl_add_u32 v12, v4, 3, v12")
    a("v_add_u32 v12, s13, v12")
    for g in range(4):
        a("ds_write_b64 v12, %s offset:%d" % (vr(EP + 2 * g, 2), 16 * g))
        a("ds_write_b64 v12, %s offset:%d" % (vr(EM + 2 * g, 2), 2048 + 16 * g))
    stamp(a, name, 8)
    RS = 64; MR = 80
    for g in range(4):
        a("ds_read_b128 %s, v13 offset:%d" % (vr(RS + 4 * g, 4), 4096 + 32 * g))
        a("ds_read_b128 %s, v13 offset:%d" % (vr(MR + 4 * g, 4), 4224 + 32 * g))
    a("v_cmp_gt_u32 vcc, 28, v3")
    a("v_mov_b32 v24, 0")
    a("v_mov_b32 v25, 1.0")
    a("v_cmp_eq_u32 s[62:63], 28, v3")
    a.nop(2)
    a("v_cndmask_b32 v24, v24, v25, s[62:63]")
    a("s_waitcnt lgkmcnt(0)")
    for i in range(16):
        a("v_mul_f32 v%d, v22, v%d" % (MR + i, MR + i))
        a("v_fma_f32 v%d, v%d, v%d, v%d" % (MR + i, VA + i, RS + i, MR + i))
        a("v_cndmask_b32 v%d, v24, v%d, vcc" % (MR + i, MR + i))
    for i in range(8):
        a("v_cvt_pk_bf16_f32 v%d, v%d, v%d" % (PQ + i, MR + 2 * i, MR + 2 * i + 1))
    a("v_and_b32 v26, 15, v1")
    a("v_lshrrev_b32 v27, 2, v26")
    a("v_and_b32 v26, 3, v26")
    a("v_lshlrev_b32 v26, 3, v26")
    a("v_lshl_add_u32 v27, v4, 2, v27")
    a("v_lshl_add_u32 v26, v27, 6, v26")
    a("v_bfe_u32 v27, v1, 4, 1")
    a("v_lshl_add_u32 v26, v27, 5, v26")
    a("v_add_u32 v26, s13, v26")
    FA = 144
    for sg in range(2):
        for s in range(2):
            base = FA + 8 * sg + 4 * s
            a("ds_read_b64_tr_b16 %s, v26 offset:%d" % (vr(base, 2), sg * 2048 + s * 1024))
            a("ds_read_b64_tr_b16 %s, v26 offset:%d" % (vr(base + 2, 2), sg * 2048 + s * 1024 + 512))
    a("s_waitcnt lgkmcnt(0)")
    for sg in range(2):
        dst = QA if sg == 0 else KA
        a("v_mfma_f32_32x32x16_bf16 %s, %s, %s, 0" % (vr(dst, 16), vr(FA + 8 * sg, 4), vr(PQ, 4)))
        a("v_mfma_f32_32x32x16_bf16 %s, %s, %s, %s" % (vr(dst, 16), vr(FA + 8 * sg + 4, 4), vr(PQ + 4, 4), vr(dst, 16)))
    a.nop(16)
    stamp(a, name, 9)
    a("s_barrier")
    a("v_lshlrev_b32 v12, 4, v1")
    a("s_lshl_b32 s12, s3, 13")
    a("v_add_u32 v12, s12, v12")
    for sg in range(2):
        src = QA if sg == 0 else KA
        for q in range(4):
            a("ds_write_b128 v12, %s offset:%d" % (vr(src + 4 * q, 4), sg * 4096 + q * 1024))
    a("s_waitcnt lgkmcnt(0)")
    a("s_barrier")
    a("v_lshlrev_b32 v12, 4, v0")
    for qq in range(2):
        for w in range(4):
            a("ds_read_b128 %s, v12 offset:%d" % (vr(64 + 16 * qq + 4 * w, 4), w * 8192 + qq * 4096))
    a("s_waitcnt lgkmcnt(0)")
    for qq in range(2):
        b = 64 + 16 * qq
        for e in range(4):
            a("v_add_f32 v%d, v%d, v%d" % (b + e, b + e, b + 4 + e))
            a("v_add_f32 v%d, v%d, v%d" % (b + 8 + e, b + 8 + e, b + 12 + e))
            a("v_add_f32 v%d, v%d, v%d" % (b + e, b + e, b + 8 + e))
    a("s_lshl_b32 s12, s5, 4")
    a("s_add_u32 s12, s12, s4")
    a("s_lshl_b32 s12, s12, 13")
    for qq in range(2):
        a("buffer_store_dwordx4 %s, v12, s[56:59], s12 offen offset:%d" % (vr(64 + 16 * qq, 4), qq * 4096 if qq * 4096 < 4096 else 0) if False else
          "buffer_store_dwordx4 %s, v12, s[56:59], s12 offen offset:%d" % (vr(64 + 16 * qq, 4), 0))
        if qq == 0:
            a("s_add_u32 s12, s12, 4096")
    epilogue(a, name)
    return name, 248, 106496

def gen_k2a(a, layer):
    name = "k2al%d_kernel" % layer
    prologue(a, name, 256)
    a("s_and_b32 s4, s2, 7")
    a("s_lshr_b32 s5, s2, 3")
    a("s_lshl_b32 s4, s4, 1")
    a("s_and_b32 s6, s5, 1")
    a("s_add_u32 s4, s4, s6")
    a("s_lshr_b32 s5, s5, 1")
    srd(a, 52, P_WS, S * 2048, WS_PHIQ)
    srd(a, 56, P_WS, 16 * 16 * 8192, WS_KVP)
    srd(a, 44, P_WS, NXB, WS_O)
    a("s_lshl_b32 s6, s4, 7")
    a("s_lshl_b32 s7, s3, 5")
    a("s_add_u32 s6, s6, s7")
    a("v_add_u32 v5, s6, v3")
    a("v_lshlrev_b32 v6, 11, v5")
    a("v_lshl_add_u32 v6, v4, 4, v6")
    a("s_lshl_b32 s7, s5, 7")
    for s in range(4):
        a("buffer_load_dwordx4 %s, v6, s[52:55], s7 offen offset:%d" % (vr(16 + 4 * s, 4), 32 * s))
    a("v_lshlrev_b32 v7, 4, v0")
    a("s_lshl_b32 s8, s5, 17")
    for r in range(16):
        for qq in range(2):
            a("s_add_u32 s9, s8, %d" % (r * 8192 + qq * 4096))
            a("buffer_load_dwordx4 %s, v7, s[56:59], s9 offen" % vr(64 + 8 * r + 4 * qq, 4))
    a("s_waitcnt vmcnt(0)")
    for e in range(8):
        for r in range(1, 16):
            a("v_add_f32 v%d, v%d, v%d" % (64 + e, 64 + e, 64 + 8 * r + e))
    a("v_cvt_pk_bf16_f32 v64, v64, v65")
    a("v_cvt_pk_bf16_f32 v65, v66, v67")
    a("v_cvt_pk_bf16_f32 v66, v68, v69")
    a("v_cvt_pk_bf16_f32 v67, v70, v71")
    a("v_mul_u32_u24 v8, 144, v3")
    a("v_lshl_add_u32 v8, v4, 3, v8")
    a("s_lshl_b32 s9, s3, 4")
    a("v_add_u32 v8, s9, v8")
    a("ds_write_b64 v8, v[64:65]")
    a("ds_write_b64 v8, v[66:67] offset:64")
    a("s_waitcnt lgkmcnt(0)")
    a("s_barrier")
    a("v_mul_u32_u24 v8, 144, v3")
    a("v_lshl_add_u32 v8, v4, 4, v8")
    for s in range(4):
        a("ds_read_b128 %s, v8 offset:%d" % (vr(32 + 4 * s, 4), 32 * s))
    a("s_waitcnt lgkmcnt(0)")
    for s in range(4):
        a("v_mfma_f32_32x32x16_bf16 v[64:79], %s, %s, %s" % (vr(32 + 4 * s, 4), vr(16 + 4 * s, 4), "0" if s == 0 else "v[64:79]"))
    a.nop(16)
    a("v_mov_b32 v9, v76")
    a("v_mov_b32 v10, v76")
    a.nop(2)
    a("v_permlane32_swap_b32 v9, v10")
    a.nop(1)
    a("v_add_f32 v10, %s, v10" % f2u(1e-6))
    a("v_rcp_f32 v10, v10")
    a.nop(1)
    for i in range(16):
        a("v_mul_f32 v%d, v10, v%d" % (64 + i, 64 + i))
    for i in range(8):
        a("v_cvt_pk_bf16_f32 v%d, v%d, v%d" % (64 + i, 64 + 2 * i, 64 + 2 * i + 1))
    a("v_mul_u32_u24 v11, 896, v5")
    a("v_lshl_add_u32 v11, v4, 3, v11")
    a("s_mul_i32 s9, s5, 56")
    for g in range(3):
        a("buffer_store_dwordx2 %s, v11, s[44:47], s9 offen offset:%d" % (vr(64 + 2 * g, 2), 16 * g))
    a("s_mov_b32 exec_hi, 0")
    a("buffer_store_dwordx2 v[70:71], v11, s[44:47], s9 offen offset:48")
    a("s_mov_b32 exec_hi, -1")
    epilogue(a, name)
    return name, 192, 32 * 144

def gen_k2(a, layer):
    name = "k2l%d_kernel" % layer
    prologue(a, name, 224)
    a("s_and_b32 s4, s2, 7")
    a("s_lshr_b32 s5, s2, 3")
    a("s_mul_hi_u32 s6, s5, 0x24924925")
    a("s_mul_i32 s7, s6, 7")
    a("s_sub_u32 s5, s5, s7")
    a("s_lshl_b32 s4, s4, 2")
    a("s_add_u32 s4, s4, s6")
    xsrc_srd(a, 40, layer)
    srd(a, 44, P_WO, D * D * 2)
    srd(a, 48, P_WS, NXB, WS_O)
    srd(a, 52, P_WS, NXB, WS_X1)
    A0 = 64; ACC = 176; BF = 192
    a("s_and_b32 s6, s3, 1")
    a("s_lshr_b32 s7, s3, 1")
    a("s_lshl_b32 s8, s4, 6")
    a("s_lshl_b32 s9, s6, 5")
    a("s_add_u32 s8, s8, s9")
    a("v_add_u32 v5, s8, v3")
    a("v_mul_u32_u24 v6, 896, v5")
    a("v_lshl_add_u32 v7, v4, 4, v6")
    for s in range(28):
        a("buffer_load_dwordx4 %s, v7, s[48:51], 0 offen offset:%d" % (vr(A0 + 4 * s, 4), 32 * s))
    dma_lane_off(a, 8, 896, 9)
    a("s_lshl_b32 s10, s5, 7")
    a("s_mul_i32 s11, s3, %d" % (16 * 896))
    a("s_add_u32 s10, s10, s11")
    a("s_lshl_b32 s11, s3, 10")
    for i in range(7):
        for t in range(2):
            a("s_add_u32 s12, s10, %d" % (i * 64 * 896 + t * 64))
            a("s_add_u32 m0, s11, %d" % (i * 4096 + t * 28672))
            a.nop(1)
            a("buffer_load_dwordx4 v8, s[44:47], s12 offen lds")
    a("s_lshl_b32 s12, s5, 7")
    a("s_lshl_b32 s13, s7, 6")
    a("s_add_u32 s12, s12, s13")
    a("v_lshl_add_u32 v9, v4, 3, v6")
    for g in range(4):
        a("buffer_load_dwordx2 %s, v9, s[40:43], s12 offen offset:%d" % (vr(32 + 2 * g, 2), 16 * g))
    tr_addr(a, 11, 12, 13)
    a("s_mul_i32 s13, s7, 28672")
    a("v_add_u32 v11, s13, v11")
    a("s_waitcnt vmcnt(0)")
    a("s_barrier")
    def breads(step, setb):
        base = BF + 4 * setb
        a("ds_read_b64_tr_b16 %s, v11 offset:%d" % (vr(base, 2), step * 1024))
        a("ds_read_b64_tr_b16 %s, v11 offset:%d" % (vr(base + 2, 2), step * 1024 + 256))
    NB = 4
    for s in range(NB - 1):
        breads(s, s)
    for s in range(28):
        if s + NB - 1 < 28:
            breads(s + NB - 1, (s + NB - 1) % NB)
            a("s_waitcnt lgkmcnt(%d)" % (2 * (NB - 1)))
        else:
            a("s_waitcnt lgkmcnt(%d)" % (2 * (27 - s)))
        a("v_mfma_f32_32x32x16_bf16 %s, %s, %s, %s" % (vr(ACC, 16), vr(BF + 4 * (s % NB), 4), vr(A0 + 4 * s, 4), "0" if s == 0 else vr(ACC, 16)))
    a.nop(16)
    for g in range(4):
        for e in range(2):
            src = 32 + 2 * g + e
            a("v_lshlrev_b32 v14, 16, v%d" % src)
            a("v_and_b32 v15, 0xffff0000, v%d" % src)
            a("v_add_f32 v%d, v%d, v14" % (ACC + 4 * g + 2 * e, ACC + 4 * g + 2 * e))
            a("v_add_f32 v%d, v%d, v15" % (ACC + 4 * g + 2 * e + 1, ACC + 4 * g + 2 * e + 1))
            a("v_cvt_pk_bf16_f32 v%d, v%d, v%d" % (src, ACC + 4 * g + 2 * e, ACC + 4 * g + 2 * e + 1))
    for g in range(4):
        a("buffer_store_dwordx2 %s, v9, s[52:55], s12 offen offset:%d" % (vr(32 + 2 * g, 2), 16 * g))
    epilogue(a, name)
    return name, 208, 2 * 28672

def gen_k3(a, layer):
    name = "k3l%d_kernel" % layer
    prologue(a, name, 224)
    a("s_and_b32 s4, s2, 7")
    a("s_lshr_b32 s5, s2, 3")
    a("s_lshr_b32 s6, s5, 1")
    a("s_and_b32 s5, s5, 1")
    a("s_lshl_b32 s4, s4, 1")
    a("s_add_u32 s4, s4, s5")
    a("s_mov_b32 s5, s6")
    srd(a, 40, P_WS, NXB, WS_X1)
    srd(a, 44, P_W1, D * F * 2)
    srd(a, 48, P_B1, F * 2)
    srd(a, 52, P_WS, S * F * 2, WS_H)
    A0 = 64; ACC = 176; BF = 208
    a("s_lshl_b32 s6, s4, 7")
    a("s_lshl_b32 s7, s3, 5")
    a("s_add_u32 s6, s6, s7")
    a("v_add_u32 v5, s6, v3")
    a("v_mul_u32_u24 v6, 896, v5")
    a("v_lshl_add_u32 v6, v4, 4, v6")
    for s in range(28):
        a("buffer_load_dwordx4 %s, v6, s[40:43], 0 offen offset:%d" % (vr(A0 + 4 * s, 4), 32 * s))
    dma_lane_off(a, 7, 3584, 8)
    a("s_lshl_b32 s8, s5, 8")
    a("s_mul_i32 s9, s3, %d" % (16 * 3584))
    a("s_add_u32 s8, s8, s9")
    a("s_lshl_b32 s10, s3, 10")
    for t in range(4):
        for i in range(7):
            a("s_add_u32 s11, s8, %d" % (i * 64 * 3584 + t * 64))
            a("s_add_u32 m0, s10, %d" % (i * 4096 + t * 28672))
            a.nop(1)
            a("buffer_load_dwordx4 v7, s[44:47], s11 offen lds")
    a("v_lshlrev_b32 v8, 3, v4")
    a("s_lshl_b32 s11, s5, 8")
    for t in range(4):
        for g in range(4):
            a("buffer_load_dwordx2 %s, v8, s[48:51], s11 offen offset:%d" % (vr(32 + 8 * t + 2 * g, 2), 64 * t + 16 * g))
    tr_addr(a, 11, 12, 13)
    a("v_add_u32 v10, 57344, v11")
    a("s_waitcnt vmcnt(44)")
    ln_stats(a, A0, 14, 15, 16, 17, 18)
    a("s_lshl_b32 s13, s3, 7")
    a("s_add_u32 s13, s13, 114688")
    a("v_lshlrev_b32 v12, 2, v3")
    a("v_add_u32 v12, s13, v12")
    a("v_lshlrev_b32 v13, 4, v4")
    a("v_add_u32 v13, s13, v13")
    a("v_mov_b32 v19, 0x3f803f80")
    a("v_mul_u32_u24 v9, 3584, v5")
    a("v_lshl_add_u32 v9, v4, 3, v9")
    a("v_mov_b32 v21, %s" % f2u(-2.0 * 0.7978845608028654 * LOG2E * 0.044715))
    a("s_waitcnt vmcnt(0)")
    a("s_barrier")
    C1 = -2.0 * 0.7978845608028654 * LOG2E
    NB = 4
    seq = [(t, s) for t in range(4) for s in range(28)]
    def breads(idx):
        t, s = seq[idx]
        base = BF + 4 * (idx % NB)
        a("ds_read_b64_tr_b16 %s, v%d offset:%d" % (vr(base, 2), 11 - (t >> 1), (t & 1) * 28672 + s * 1024))
        a("ds_read_b64_tr_b16 %s, v%d offset:%d" % (vr(base + 2, 2), 11 - (t >> 1), (t & 1) * 28672 + s * 1024 + 256))
    CSR = 224
    def epi_ops(t):
        ops = []
        acc = ACC + 16 * (t & 1)
        for i in range(16):
            g, e = i >> 2, i & 3
            braw = 32 + 8 * t + 2 * g + (e >> 1)
            x = acc + i
            if e & 1:
                ops.append("v_and_b32 v22, 0xffff0000, v%d" % braw)
            else:
                ops.append("v_lshlrev_b32 v22, 16, v%d" % braw)
            ops.append("v_fma_f32 v22, v%d, v17, v22" % (CSR + i))
            ops.append("v_fma_f32 v%d, v%d, v18, v22" % (x, x))
            ops.append("v_mul_f32 v22, v%d, v%d" % (x, x))
            ops.append("v_fmaak_f32 v22, v21, v22, %s" % f2u(C1))
            ops.append("v_mul_f32 v22, v%d, v22" % x)
            ops.append("v_exp_f32 v22, v22")
            ops.append("v_add_f32 v22, 1.0, v22" if False else "s_nop 0")
            ops.append("v_add_f32 v22, 1.0, v22")
            ops.append("v_rcp_f32 v22, v22")
            ops.append("s_nop 0")
            ops.append("v_mul_f32 v%d, v%d, v22" % (x, x))
        for i in range(8):
            ops.append("v_cvt_pk_bf16_f32 v%d, v%d, v%d" % (acc + i, acc + 2 * i, acc + 2 * i + 1))
        for g in range(4):
            ops.append("buffer_store_dwordx2 %s, v9, s[52:55], s11 offen offset:%d" % (vr(acc + 2 * g, 2), 64 * t + 16 * g))
        return ops
    for i in range(NB - 1):
        breads(i)
    pending = []
    for idx, (t, s) in enumerate(seq):
        if s == 0:
            a("v_mov_b32 v20, 0")
        nlg = 0
        if idx + NB - 1 < len(seq):
            breads(idx + NB - 1)
            a("s_waitcnt lgkmcnt(%d)" % (2 * (NB - 1)))
        else:
            a("s_waitcnt lgkmcnt(%d)" % (2 * (len(seq) - 1 - idx)))
        b = BF + 4 * (idx % NB)
        acc = ACC + 16 * (t & 1)
        a("v_mfma_f32_32x32x16_bf16 %s, %s, %s, %s" % (vr(acc, 16), vr(b, 4), vr(A0 + 4 * s, 4), "0" if s == 0 else vr(acc, 16)))
        for j in range(4):
            a("v_dot2_f32_bf16 v20, v%d, v19, v20" % (b + j))
        if pending and s >= 2:
            n = min(len(pending), 9)
            for o in pending[:n]:
                a(o)
            pending = pending[n:]
        if s == 27:
            assert not pending
            a.nop(4)
            xhalf_sum(a, 20, 23)
            a("ds_write_b32 v12, v20")
            a("s_waitcnt lgkmcnt(0)")
            for g in range(4):
                a("ds_read_b128 %s, v13 offset:%d" % (vr(CSR + 4 * g, 4), 32 * g))
            a("s_waitcnt lgkmcnt(0)")
            pending = epi_ops(t)
            if t == 3:
                a.nop(16)
                for o in pending:
                    a(o)
                pending = []
    epilogue(a, name)
    return name, 240, 114688 + 512

def gen_k4(a, layer):
    name = "k4l%d_kernel" % layer
    prologue(a, name, 224)
    a("s_and_b32 s4, s2, 7")
    a("s_lshr_b32 s5, s2, 3")
    a("s_mul_hi_u32 s6, s5, 0x24924925")
    a("s_mul_i32 s7, s6, 7")
    a("s_sub_u32 s5, s5, s7")
    a("s_lshl_b32 s4, s4, 2")
    a("s_add_u32 s4, s4, s6")
    srd(a, 40, P_WS, S * F * 2, WS_H)
    srd(a, 44, P_W2, F * D * 2)
    srd(a, 48, P_WS, NXB, WS_X1)
    if layer == 0:
        srd(a, 52, P_WS, NXB, WS_X2)
    else:
        srd(a, 52, P_OUT, NXB)
    srd(a, 56, P_B2, D * 2)
    ACC = 64; FR = 80
    a("s_and_b32 s6, s3, 1")
    a("s_lshr_b32 s7, s3, 1")
    a("v_lshrrev_b32 v6, 3, v1")
    a("v_and_b32 v7, 7, v1")
    a("v_xor_b32 v7, v7, v6")
    a("v_mul_u32_u24 v8, 3584, v6")
    a("v_lshl_add_u32 v8, v7, 4, v8")
    a("s_lshl_b32 s8, s4, 6")
    a("s_lshl_b32 s9, s3, 4")
    a("s_add_u32 s8, s8, s9")
    a("s_mul_i32 s8, s8, 3584")
    dma_lane_off(a, 9, 896, 10)
    a("s_lshl_b32 s10, s5, 7")
    a("s_mul_i32 s11, s3, %d" % (16 * 896))
    a("s_add_u32 s10, s10, s11")
    a("s_lshl_b32 s12, s3, 11")
    a("s_lshl_b32 s13, s3, 10")
    def dma(stage):
        slot = (stage % 4) * 16384
        for i in range(2):
            a("s_add_u32 s14, s8, %d" % (stage * 128 + i * 8 * 3584))
            a("s_add_u32 m0, s12, %d" % (slot + i * 1024))
            a.nop(1)
            a("buffer_load_dwordx4 v8, s[40:43], s14 offen lds")
        for t in range(2):
            a("s_add_u32 s14, s10, %d" % (stage * 64 * 896 + t * 64))
            a("s_add_u32 m0, s13, %d" % (slot + 8192 + t * 4096))
            a.nop(1)
            a("buffer_load_dwordx4 v9, s[44:47], s14 offen lds")
    for st in range(3):
        dma(st)
    a("s_lshl_b32 s14, s4, 6")
    a("s_lshl_b32 s15, s6, 5")
    a("s_add_u32 s14, s14, s15")
    a("v_add_u32 v5, s14, v3")
    a("v_mul_u32_u24 v10, 896, v5")
    a("v_lshl_add_u32 v10, v4, 3, v10")
    a("s_lshl_b32 s60, s5, 7")
    a("s_lshl_b32 s61, s7, 6")
    a("s_add_u32 s60, s60, s61")
    for g in range(4):
        a("buffer_load_dwordx2 %s, v10, s[48:51], s60 offen offset:%d" % (vr(32 + 2 * g, 2), 16 * g))
    a("v_lshlrev_b32 v12, 3, v4")
    for g in range(4):
        a("buffer_load_dwordx2 %s, v12, s[56:59], s60 offen offset:%d" % (vr(40 + 2 * g, 2), 16 * g))
    a("s_lshl_b32 s15, s6, 5")
    a("v_add_u32 v17, s15, v3")
    a("v_and_b32 v18, 7, v3")
    for ks in range(4):
        a("v_or_b32 v19, %d, v4" % (2 * ks))
        a("v_xor_b32 v19, v19, v18")
        a("v_lshlrev_b32 v19, 4, v19")
        a("v_lshl_add_u32 v%d, v17, 7, v19" % (13 + ks))
    tr_addr(a, 11, 19, 20)
    a("s_lshl_b32 s15, s7, 12")
    a("s_add_u32 s15, s15, 8192")
    a("v_add_u32 v11, s15, v11")
    for st in range(28):
        slot = (st % 4) * 16384
        if st <= 2:
            n = 4 * (2 - st) + 8
        else:
            n = 4 * min(2, 27 - st)
        a("s_waitcnt vmcnt(%d)" % n)
        a("s_barrier")
        if st + 3 < 28:
            dma(st + 3)
        for ks in range(4):
            a("ds_read_b128 %s, v%d offset:%d" % (vr(FR + 8 * ks, 4), 13 + ks, slot))
            a("ds_read_b64_tr_b16 %s, v11 offset:%d" % (vr(FR + 8 * ks + 4, 2), slot + ks * 1024))
            a("ds_read_b64_tr_b16 %s, v11 offset:%d" % (vr(FR + 8 * ks + 6, 2), slot + ks * 1024 + 256))
        for ks in range(4):
            a("s_waitcnt lgkmcnt(%d)" % (3 * (3 - ks)))
            a("v_mfma_f32_32x32x16_bf16 %s, %s, %s, %s" % (vr(ACC, 16), vr(FR + 8 * ks + 4, 4), vr(FR + 8 * ks, 4), "0" if (st == 0 and ks == 0) else vr(ACC, 16)))
    a.nop(16)
    for g in range(4):
        for e in range(2):
            src = 32 + 2 * g + e
            bsrc = 40 + 2 * g + e
            i0 = ACC + 4 * g + 2 * e
            a("v_lshlrev_b32 v20, 16, v%d" % src)
            a("v_and_b32 v21, 0xffff0000, v%d" % src)
            a("v_lshlrev_b32 v22, 16, v%d" % bsrc)
            a("v_and_b32 v23, 0xffff0000, v%d" % bsrc)
            a("v_add_f32 v%d, v%d, v22" % (i0, i0))
            a("v_add_f32 v%d, v%d, v23" % (i0 + 1, i0 + 1))
            a("v_add_f32 v%d, v%d, v20" % (i0, i0))
            a("v_add_f32 v%d, v%d, v21" % (i0 + 1, i0 + 1))
            a("v_cvt_pk_bf16_f32 v%d, v%d, v%d" % (src, i0, i0 + 1))
    for g in range(4):
        a("buffer_store_dwordx2 %s, v10, s[52:55], s60 offen offset:%d" % (vr(32 + 2 * g, 2), 16 * g))
    epilogue(a, name)
    return name, 112, 65536

def main():
    a = Asm()
    ks = []
    for layer in range(2):
        ks.append(gen_k1(a, layer) + (256,))
        ks.append(gen_k2a(a, layer) + (256,))
        ks.append(gen_k2(a, layer) + (224,))
        ks.append(gen_k3(a, layer) + (224,))
        ks.append(gen_k4(a, layer) + (224,))
    hdr = open("cdna_kernels/%s.s.ref" % NAME).read().split("\n")
    out = [l for l in hdr[:13]]
    for (n, nv, lds, g) in ks:
        out.append("; @launch kernel=%s grid=(%d,1,1) block=(256,1,1) lds=%d" % (n, g, lds))
    out.append('.amdgcn_target "amdgcn-amd-amdhsa--gfx950"')
    out.append(".text")
    for (n, nv, lds, g) in ks:
        out.append(".globl %s" % n)
    out += a.lines
    out.append('.section .rodata,"a"')
    for (n, nv, lds, g) in ks:
        out.append(".p2align 6")
        out.append(".amdhsa_kernel %s" % n)
        out.append("  .amdhsa_next_free_vgpr %d" % nv)
        out.append("  .amdhsa_next_free_sgpr 96")
        out.append("  .amdhsa_accum_offset %d" % ((nv + 3) // 4 * 4))
        out.append("  .amdhsa_group_segment_fixed_size 0")
        out.append("  .amdhsa_kernarg_size 96")
        out.append("  .amdhsa_user_sgpr_count 2")
        out.append("  .amdhsa_user_sgpr_kernarg_segment_ptr 1")
        out.append("  .amdhsa_system_sgpr_workgroup_id_x 1")
        out.append(".end_amdhsa_kernel")
    dst = sys.argv[1] if len(sys.argv) > 1 else "cdna_kernels/%s.s" % NAME
    open(dst, "w").write("\n".join(out) + "\n")

if __name__ == "__main__":
    main()
```

```python
import struct, sys, os
from gen import Asm, vr, sr, f2u, srd, xhalf_sum, xhalf_op, tr_addr, dma_lane_off, ln_stats, prologue, epilogue, stamp, LOG2E
from gen import P_AX, P_WQKV, P_WPHI, P_WO, P_BX, P_W1, P_B1, P_W2, P_B2, P_OUT, P_DBG, P_WS, NAME
S, D, H, DH, F = 2048, 448, 16, 28, 1792
KB = 1024
WS_XF   = 0
WS_X1   = [2 << 20, 4 << 20]
WS_X2   = 6 << 20
WS_PHIQ = [8 << 20, 12 << 20]
WS_KVA  = [16 << 20, (16 << 20) + 131072]
WS_CNT  = 17 << 20
WS_H    = [18 << 20, 26 << 20]
WS_WQKV = 34 << 20
WS_W1   = 36 << 20
WS_WO   = 38 << 20
WS_W2   = 39 << 20
WS_CSQ  = 41 << 20
WS_CS1  = WS_CSQ + 8192
NXB = S * D * 2
KNAME = "fused_kernel"
C_KV  = lambda l: 1024 + 128 * l
C_KVS = lambda l: 2048 + 2048 * l
C_23  = lambda l: 256 + 64 * l
C_34  = lambda l: 512 + 64 * l
C_41  = 768

DET = os.environ.get("DET", "")
def dstamp(a, name, idx):
    if name == DET:
        stamp(a, KNAME, idx)

def signal(a, soff):
    a("s_waitcnt vmcnt(0) lgkmcnt(0)")
    a("s_barrier")
    l = a.newlabel("sig")
    a("s_cmp_eq_u32 s3, 0")
    a("s_cbranch_scc0 %s" % l)
    a("v_mov_b32 v5, 1")
    a("v_mov_b32 v6, 0")
    a("s_mov_b64 exec, 1")
    a("buffer_atomic_add v5, v6, s[72:75], %s offen sc1" % soff)
    a("s_mov_b64 exec, -1")
    a.label(l)

def signal2(a, srdn, soff, moff, n):
    a("s_waitcnt vmcnt(0) lgkmcnt(0)")
    a("s_barrier")
    l = a.newlabel("sig")
    a("s_cmp_eq_u32 s3, 0")
    a("s_cbranch_scc0 %s" % l)
    a("v_mov_b32 v5, 1")
    a("v_mov_b32 v6, 0")
    a("s_mov_b64 exec, 1")
    a("buffer_atomic_add v5, v6, %s, %s offen sc0 sc1" % (sr(srdn), soff))
    a("s_waitcnt vmcnt(0)")
    a("v_readfirstlane_b32 s14, v5")
    a("v_mov_b32 v5, 1")
    a.nop(3)
    a("s_cmp_eq_u32 s14, %d" % (n - 1))
    a("s_cbranch_scc0 %s_r" % l)
    a("buffer_atomic_add v5, v6, %s, %s offen sc1" % (sr(srdn), moff))
    a.label("%s_r" % l)
    a("s_mov_b64 exec, -1")
    a.label(l)

def wait_cnt(a, srdn, soff, nsh, target):
    l = a.newlabel("poll"); d = a.newlabel("pdone")
    a("s_cmp_eq_u32 s3, 3")
    a("s_cbranch_scc0 %s" % d)
    a("s_mov_b64 exec, 0x%x" % ((1 << nsh) - 1))
    a("v_lshlrev_b32 v6, 2, v1")
    a.label(l)
    a("buffer_load_dword v5, v6, %s, %s offen sc1" % (sr(srdn), soff))
    a("s_waitcnt vmcnt(0)")
    a("v_cmp_gt_u32 vcc, %d, v5" % target)
    a("s_cbranch_vccz %s_x" % d)
    a("s_sleep 6")
    a("s_branch %s" % l)
    a.label("%s_x" % d)
    a("s_mov_b64 exec, -1")
    a.label(d)
    a("s_barrier")

def swap_store(a, base, vaddr, s_srd, soff, off0, nt=""):
    a.nop(1)
    for p in range(2):
        b = base + 4 * p
        a("v_permlane32_swap_b32 v%d, v%d" % (b, b + 2))
        a("v_permlane32_swap_b32 v%d, v%d" % (b + 1, b + 3))
    for p in range(2):
        b = base + 4 * p
        a("buffer_store_dwordx4 %s, v%d, %s, %s offen offset:%d%s" % (vr(b, 4), vaddr, sr(s_srd), soff, off0 + 1024 * p, nt))

def unswap(a, base):
    for p in range(2):
        b = base + 4 * p
        a("v_permlane32_swap_b32 v%d, v%d" % (b, b + 2))
        a("v_permlane32_swap_b32 v%d, v%d" % (b + 1, b + 3))

def gen_k0(a):
    name = "k0"
    srd(a, 56, P_WS, 64 << 20, 0)
    a("v_lshlrev_b32 v9, 4, v1")
    for r in range(4):
        a("v_mov_b32 v%d, 0" % (32 + r))
    a("s_cmp_eq_u32 s3, 0")
    a("s_cbranch_scc0 k0_nz")
    a("s_lshl_b32 s8, s2, 10")
    a("s_add_u32 s8, s8, 0x%x" % WS_KVA[0])
    a("buffer_store_dwordx4 v[32:35], v9, s[56:59], s8 offen sc1")
    a("s_cmp_lt_u32 s2, 8")
    a("s_cbranch_scc0 k0_nz")
    a("s_lshl_b32 s8, s2, 10")
    a("s_add_u32 s8, s8, 0x%x" % WS_CNT)
    a("buffer_store_dwordx4 v[32:35], v9, s[56:59], s8 offen sc1")
    a.label("k0_nz")
    a.nop(2)
    a("s_cmp_ge_u32 s2, 238")
    a("s_cbranch_scc1 k0_end")
    tr_addr(a, 11, 12, 13)
    a("v_mov_b32 v19, 0x3f803f80")
    def wpath(lbl, ptr, size, stride, setup, cs, perm=False):
        a.label(lbl)
        srd(a, 44, ptr, size)
        setup()
        dma_lane_off(a, 7, stride, 8)
        a("s_mul_i32 s11, s3, %d" % (16 * stride))
        a("s_add_u32 s8, s8, s11")
        a("s_lshl_b32 s12, s3, 10")
        for i in range(7):
            a("s_add_u32 s11, s8, %d" % (i * 64 * stride))
            a("s_add_u32 m0, s12, %d" % (i * 4096))
            a.nop(1)
            a("buffer_load_dwordx4 v7, s[44:47], s11 offen lds")
        a("v_mov_b32 v20, 0")
        a("s_waitcnt vmcnt(0)")
        a("s_barrier")
        if not perm:
            a("s_mul_i32 s11, s3, 7168")
            a("v_add_u32 v12, s11, v11")
            a("s_add_u32 s9, s9, s11")
            for i in range(7):
                a("ds_read_b64_tr_b16 %s, v12 offset:%d" % (vr(32 + 4 * i, 2), 1024 * i))
                a("ds_read_b64_tr_b16 %s, v12 offset:%d" % (vr(34 + 4 * i, 2), 1024 * i + 256))
            a("s_waitcnt lgkmcnt(0)")
            for i in range(7):
                a("buffer_store_dwordx4 %s, v9, s[56:59], s9 offen sc1" % vr(32 + 4 * i, 4))
                a("s_add_u32 s9, s9, 1024")
            if cs:
                for i in range(28):
                    a("v_dot2_f32_bf16 v20, v%d, v19, v20" % (32 + i))
                a.nop(4)
                xhalf_sum(a, 20, 21)
                a("v_lshlrev_b32 v12, 2, v3")
                a("s_lshl_b32 s11, s3, 7")
                a("v_add_u32 v12, s11, v12")
                a("ds_write_b32 v12, v20 offset:28672")
                a("s_waitcnt lgkmcnt(0)")
                a("s_barrier")
                a("v_lshlrev_b32 v12, 2, v3")
                for w in range(4):
                    a("ds_read_b32 v%d, v12 offset:%d" % (22 + w, 28672 + 128 * w))
                a("s_waitcnt lgkmcnt(0)")
                a("v_add_f32 v22, v22, v23")
                a("v_add_f32 v24, v24, v25")
                a("v_add_f32 v22, v22, v24")
                a("buffer_store_dword v22, v12, s[56:59], s10 offen sc1")
        else:
            a("v_lshlrev_b32 v12, 8, v4")
            a("v_sub_u32 v12, v11, v12")
            a("s_mul_i32 s11, s3, %d" % (4 * 28 * 64))
            a("v_add_u32 v12, s11, v12")
            a("s_lshl_b32 s11, s3, 13")
            a("s_add_u32 s9, s9, s11")
            a("s_mov_b32 s60, 0")
            a("s_mov_b32 s61, -1")
            for hh in range(4):
                for s in range(2):
                    b = 32 + 8 * hh + 4 * s
                    ro = (28 * hh + 16 * s) * 64
                    a("ds_read_b64_tr_b16 %s, v12 offset:%d" % (vr(b, 2), ro))
                    a("ds_read_b64_tr_b16 %s, v12 offset:%d" % (vr(b + 2, 2), ro + 512))
            a("s_waitcnt lgkmcnt(0)")
            for hh in range(4):
                b = 32 + 8 * hh + 4
                a("v_cndmask_b32 v%d, v%d, 0, s[60:61]" % (b + 2, b + 2))
                a("v_cndmask_b32 v%d, v%d, 0, s[60:61]" % (b + 3, b + 3))
            for i in range(8):
                a("buffer_store_dwordx4 %s, v9, s[56:59], s9 offen sc1" % vr(32 + 4 * i, 4))
                a("s_add_u32 s9, s9, 1024")
        a("s_branch %s_end" % name)
    a("s_cmp_ge_u32 s2, 174")
    a("s_cbranch_scc1 k0_x")
    a("s_cmp_ge_u32 s2, 118")
    a("s_cbranch_scc1 k0_w2")
    a("s_cmp_ge_u32 s2, 104")
    a("s_cbranch_scc1 k0_wo")
    a("s_cmp_ge_u32 s2, 48")
    a("s_cbranch_scc1 k0_w1")
    def su_qkv():
        a("s_mul_hi_u32 s4, s2, 0x55555556")
        a("s_mul_i32 s5, s4, 3")
        a("s_sub_u32 s5, s2, s5")
        a("s_mul_i32 s8, s5, 896")
        a("s_mul_i32 s6, s4, 56")
        a("s_add_u32 s8, s8, s6")
        a("s_mul_i32 s9, s2, 28672")
        a("s_add_u32 s9, s9, 0x%x" % WS_WQKV)
        a("s_lshl_b32 s10, s2, 7")
        a("s_add_u32 s10, s10, 0x%x" % WS_CSQ)
    wpath("k0_qkv", P_WQKV, D * 3 * D * 2, 2688, su_qkv, True)
    def su_w1():
        a("s_sub_u32 s4, s2, 48")
        a("s_lshl_b32 s8, s4, 6")
        a("s_mul_i32 s9, s4, 28672")
        a("s_add_u32 s9, s9, 0x%x" % WS_W1)
        a("s_lshl_b32 s10, s4, 7")
        a("s_add_u32 s10, s10, 0x%x" % WS_CS1)
    wpath("k0_w1", P_W1, D * F * 2, 3584, su_w1, True)
    def su_wo():
        a("s_sub_u32 s4, s2, 104")
        a("s_lshl_b32 s8, s4, 6")
        a("s_lshl_b32 s9, s4, 15")
        a("s_add_u32 s9, s9, 0x%x" % WS_WO)
    wpath("k0_wo", P_WO, D * D * 2, 896, su_wo, False, perm=True)
    def su_w2():
        a("s_sub_u32 s4, s2, 118")
        a("s_lshr_b32 s5, s4, 2")
        a("s_and_b32 s6, s4, 3")
        a("s_lshl_b32 s8, s5, 6")
        a("s_mul_i32 s7, s6, %d" % (448 * 896))
        a("s_add_u32 s8, s8, s7")
        a("s_mul_i32 s9, s4, 28672")
        a("s_add_u32 s9, s9, 0x%x" % WS_W2)
    wpath("k0_w2", P_W2, F * D * 2, 896, su_w2, False)
    a.label("k0_x")
    srd(a, 44, P_AX, NXB)
    a("s_sub_u32 s4, s2, 174")
    a("s_mul_i32 s8, s4, 28672")
    a("s_lshl_b32 s12, s3, 10")
    a("s_add_u32 s11, s8, s12")
    for i in range(7):
        a("s_add_u32 m0, s12, %d" % (i * 4096))
        a.nop(1)
        a("buffer_load_dwordx4 v9, s[44:47], s11 offen lds")
        a("s_add_u32 s11, s11, 4096")
    a("v_mul_u32_u24 v12, 896, v3")
    a("v_lshl_add_u32 v12, v4, 4, v12")
    a("s_mul_i32 s11, s3, 224")
    a("v_add_u32 v12, s11, v12")
    a("s_mul_i32 s11, s3, 7168")
    a("s_add_u32 s9, s8, s11")
    a("s_waitcnt vmcnt(0)")
    a("s_barrier")
    for i in range(7):
        a("ds_read_b128 %s, v12 offset:%d" % (vr(32 + 4 * i, 4), 32 * i))
    a("s_waitcnt lgkmcnt(0)")
    for i in range(7):
        a("buffer_store_dwordx4 %s, v9, s[56:59], s9 offen sc1" % vr(32 + 4 * i, 4))
        a("s_add_u32 s9, s9, 1024")
    a.label("k0_end")
    dstamp(a, name, 10)
    a("s_waitcnt vmcnt(0)")
    dstamp(a, name, 11)
    a("s_and_b32 s8, s2, 15")
    a("s_lshl_b32 s8, s8, 2")
    a("s_mov_b32 s9, 128")
    signal2(a, 76, "s8", "s9", 16)
    dstamp(a, name, 12)
    wait_cnt(a, 76, "s9", 1, 16)

def gen_k1(a, layer):
    name = "k1l%d" % layer
    a("s_and_b32 s4, s2, 7")
    a("s_lshr_b32 s5, s2, 3")
    a("s_lshl_b32 s4, s4, 1")
    a("s_and_b32 s6, s5, 1")
    a("s_add_u32 s4, s4, s6")
    a("s_lshr_b32 s5, s5, 1")
    srd(a, 40, P_WS, NXB, WS_XF if layer == 0 else WS_X2)
    srd(a, 44, P_WS, 48 * 28672, WS_WQKV)
    srd(a, 48, P_WPHI, H * DH * DH * 2)
    srd(a, 52, P_WS, 4 << 20, WS_PHIQ[layer])
    srd(a, 56, P_WS, 131072, WS_KVA[layer])
    srd(a, 64, P_WS, 16384, WS_CSQ)
    A0 = 64; QA, KA, VA = 176, 192, 208; BF = 224
    a("v_lshlrev_b32 v9, 4, v1")
    a("s_lshl_b32 s6, s4, 2")
    a("s_add_u32 s6, s6, s3")
    a("v_lshlrev_b32 v8, 1, v3")
    a("v_mul_u32_u24 v7, 224, v4")
    a("v_add_u32 v8, v8, v7")
    a("s_mul_i32 s12, s5, 1568")
    a("v_add_u32 v8, s12, v8")
    a("v_mov_b32 v10, 0x40000000")
    a("v_cmp_gt_u32 vcc, 28, v3")
    a.nop(2)
    a("v_cndmask_b32 v8, v10, v8, vcc")
    a("v_cmp_eq_u32 vcc, 0, v4")
    a.nop(2)
    a("v_cndmask_b32 v7, v10, v8, vcc")
    for s in range(2):
        for j in range(8):
            d0 = 16 * s + 8 * (j >> 2) + (j & 3)
            src = 7 if (s == 1 and j >= 4) else 8
            a("buffer_load_ushort v%d, v%d, s[48:51], 0 offen offset:%d" % (32 + 8 * s + j, src, d0 * 56))
    a("s_mul_i32 s12, s5, 384")
    a("v_lshlrev_b32 v7, 4, v4")
    for g in range(4):
        a("buffer_load_dwordx4 %s, v7, s[64:67], s12 offen offset:%d" % (vr(240 + 4 * g, 4) if False else vr(16 + 4 * g, 4), 32 * g))
    for g in range(4):
        a("buffer_load_dwordx4 %s, v7, s[64:67], s12 offen offset:%d" % (vr(240 + 4 * g, 4), 128 + 32 * g))
    a("v_lshlrev_b32 v7, 2, v3")
    a("buffer_load_dword v56, v7, s[64:67], s12 offen offset:256")
    a("s_mul_i32 s8, s5, %d" % (3 * 28672))
    for w in range(4):
        pass
    for w in range(4):
        a("s_cmp_eq_u32 s3, %d" % w)
        a("s_cbranch_scc0 %s_dw%d" % (name, w))
        for i in range(21):
            j = 4 * i + w
            ks, t = j // 3, j % 3
            off = t * 28672 + ks * 1024
            a("s_add_u32 s11, s8, %d" % off)
            a("s_mov_b32 m0, %d" % off)
            a.nop(1)
            a("buffer_load_dwordx4 v9, s[44:47], s11 offen lds")
        a.label("%s_dw%d" % (name, w))
    a("s_mov_b32 s60, 0")
    a("s_mov_b32 s61, -1")
    a("v_add_u32 v10, 57344, v9")
    dstamp(a, name, 10)
    if layer == 1:
        a("s_lshl_b32 s14, s4, 2")
        a("s_add_u32 s14, s14, %d" % C_41)
        wait_cnt(a, 72, "s14", 1, 14)
    dstamp(a, name, 11)
    a("s_mul_i32 s7, s6, 28672")
    for s in range(28):
        if s % 4 == 0 and s:
            a("s_add_u32 s7, s7, 4096")
        a("buffer_load_dwordx4 %s, v9, s[40:43], s7 offen offset:%d" % (vr(A0 + 4 * s, 4), 1024 * (s % 4)))
    a("s_mul_i32 s13, s3, 5120")
    a("s_add_u32 s13, s13, 86016")
    def breads(step, setb):
        for t in range(3):
            a("ds_read_b128 %s, v%d offset:%d" % (vr(BF + 12 * setb + 4 * t, 4) if False else vr(BFs[setb] + 4 * t, 4), 10 if t == 2 else 9, (t & 1) * 28672 + step * 1024))
    BFs = [224, 2]
    BFs = [224, 48 + 0]
    a("s_waitcnt vmcnt(28)")
    for j in range(8):
        a("v_lshl_or_b32 v%d, v%d, 16, v%d" % (48 + j, 33 + 2 * j, 32 + 2 * j))
    BFs = [224, 32]
    a("s_barrier")
    dstamp(a, name, 12)
    breads(0, 0)
    for s in range(28):
        sb = s & 1
        if s + 1 < 28:
            breads(s + 1, sb ^ 1)
            a("s_waitcnt vmcnt(%d) lgkmcnt(3)" % (27 - s))
        else:
            a("s_waitcnt vmcnt(0) lgkmcnt(0)")
        b = BFs[sb]
        x = A0 + 4 * s
        c = "0" if s == 0 else None
        a("v_mfma_f32_32x32x16_bf16 %s, %s, %s, %s" % (vr(QA, 16), vr(b, 4), vr(x, 4), c or vr(QA, 16)))
        a("v_mfma_f32_32x32x16_bf16 %s, %s, %s, %s" % (vr(KA, 16), vr(b + 4, 4), vr(x, 4), c or vr(KA, 16)))
        a("v_mfma_f32_32x32x16_bf16 %s, %s, %s, %s" % (vr(VA, 16), vr(x, 4), vr(b + 8, 4), c or vr(VA, 16)))
    ln_stats(a, A0, 14, 15, 57, 58, 59)
    a("v_lshlrev_b32 v12, 2, v3")
    a("v_add_u32 v12, s13, v12")
    a("ds_write_b32 v12, v59 offset:4096")
    a("ds_write_b32 v12, v58 offset:4224")
    dstamp(a, name, 13)
    a("v_lshlrev_b32 v13, 4, v4")
    a("v_add_u32 v13, s13, v13")
    a.nop(8)
    CS = 64; PK = 80; PQ = 96; EP = 112; EM = 128
    def feature_map(acc, cs):
        for i in range(16):
            a("v_mul_f32 v%d, v58, v%d" % (CS + i, cs + i))
            a("v_fma_f32 v%d, v%d, v59, v%d" % (CS + i, acc + i, CS + i))
        for i in range(8):
            a("v_cvt_pk_bf16_f32 v%d, v%d, v%d" % (PK + i, CS + 2 * i, CS + 2 * i + 1))
        a.nop(2)
        a("v_mfma_f32_32x32x16_bf16 %s, %s, %s, 0" % (vr(PQ, 16), vr(48, 4), vr(PK, 4)))
        a("v_mfma_f32_32x32x16_bf16 %s, %s, %s, %s" % (vr(PQ, 16), vr(52, 4), vr(PK + 4, 4), vr(PQ, 16)))
        a("v_mov_b32 v24, 0xff7fffff")
        a("v_mov_b32 v25, 0x7f7fffff")
        a.nop(14)
        for i in range(4):
            a("v_cndmask_b32 v%d, v%d, v24, s[60:61]" % (26 + i, PQ + 12 + i))
            a("v_cndmask_b32 v%d, v%d, v25, s[60:61]" % (144 + i, PQ + 12 + i))
        a("v_max3_f32 v30, v%d, v%d, v%d" % (PQ, PQ + 1, PQ + 2))
        a("v_min3_f32 v31, v%d, v%d, v%d" % (PQ, PQ + 1, PQ + 2))
        for i in range(3, 11, 2):
            a("v_max3_f32 v30, v%d, v%d, v30" % (PQ + i, PQ + i + 1))
            a("v_min3_f32 v31, v%d, v%d, v31" % (PQ + i, PQ + i + 1))
        a("v_max_f32 v30, v%d, v30" % (PQ + 11))
        a("v_min_f32 v31, v%d, v31" % (PQ + 11))
        a("v_max3_f32 v30, v26, v27, v30")
        a("v_min3_f32 v31, v144, v145, v31")
        a("v_max3_f32 v30, v28, v29, v30")
        a("v_min3_f32 v31, v146, v147, v31")
        xhalf_op(a, "v_max_f32", 30, 12)
        xhalf_op(a, "v_min_f32", 31, 12)
        a("v_mov_b32 v24, %s" % f2u(LOG2E))
        a("v_mul_f32 v30, %s, v30" % f2u(-LOG2E))
        a("v_mul_f32 v31, %s, v31" % f2u(LOG2E))
        for i in range(16):
            a("v_fma_f32 v%d, v%d, v24, v30" % (EP + i, PQ + i))
            a("v_fma_f32 v%d, -v%d, v24, v31" % (EM + i, PQ + i))
        for i in range(16):
            a("v_exp_f32 v%d, v%d" % (EP + i, EP + i))
            a("v_exp_f32 v%d, v%d" % (EM + i, EM + i))
        a.nop(1)
        for i in range(12, 16):
            a("v_cndmask_b32 v%d, v%d, 0, s[60:61]" % (EP + i, EP + i))
            a("v_cndmask_b32 v%d, v%d, 0, s[60:61]" % (EM + i, EM + i))
        a("v_add_f32 v30, v%d, v%d" % (EP, EP + 1))
        a("v_add_f32 v31, v%d, v%d" % (EM, EM + 1))
        for i in range(2, 16):
            a("v_add_f32 v30, v%d, v30" % (EP + i))
            a("v_add_f32 v31, v%d, v31" % (EM + i))
        xhalf_sum(a, 30, 12)
        xhalf_sum(a, 31, 12)
        a("v_rcp_f32 v30, v30")
        a("v_rcp_f32 v31, v31")
        a.nop(1)
        for i in range(16):
            a("v_mul_f32 v%d, v30, v%d" % (EP + i, EP + i))
            a("v_mul_f32 v%d, v31, v%d" % (EM + i, EM + i))
        for i in range(8):
            a("v_cvt_pk_bf16_f32 v%d, v%d, v%d" % (EP + i, EP + 2 * i, EP + 2 * i + 1))
            a("v_cvt_pk_bf16_f32 v%d, v%d, v%d" % (EM + i, EM + 2 * i, EM + 2 * i + 1))
    feature_map(QA, 16)
    a("s_lshl_b32 s12, s6, 4")
    a("s_add_u32 s12, s12, s5")
    a("s_lshl_b32 s12, s12, 12")
    swap_store(a, EP, 9, 52, "s12", 0, " sc1")
    swap_store(a, EM, 9, 52, "s12", 2048, " sc1")
    a.nop(2)
    stamp(a, name, 7)
    feature_map(KA, 240)
    a("v_lshlrev_b32 v12, 6, v3")
    a("v_lshl_add_u32 v12, v4, 3, v12")
    a("v_add_u32 v12, s13, v12")
    for g in range(4):
        a("ds_write_b64 v12, %s offset:%d" % (vr(EP + 2 * g, 2), 16 * g))
        a("ds_write_b64 v12, %s offset:%d" % (vr(EM + 2 * g, 2), 2048 + 16 * g))
    stamp(a, name, 8)
    RS = 64; MR = 80
    for g in range(4):
        a("ds_read_b128 %s, v13 offset:%d" % (vr(RS + 4 * g, 4), 4096 + 32 * g))
        a("ds_read_b128 %s, v13 offset:%d" % (vr(MR + 4 * g, 4), 4224 + 32 * g))
    a("v_cmp_gt_u32 vcc, 28, v3")
    a("v_mov_b32 v24, 0")
    a("v_mov_b32 v25, 1.0")
    a("v_cmp_eq_u32 s[62:63], 28, v3")
    a.nop(2)
    a("v_cndmask_b32 v24, v24, v25, s[62:63]")
    a("s_waitcnt lgkmcnt(0)")
    for i in range(16):
        a("v_mul_f32 v%d, v56, v%d" % (MR + i, MR + i))
        a("v_fma_f32 v%d, v%d, v%d, v%d" % (MR + i, VA + i, RS + i, MR + i))
        a("v_cndmask_b32 v%d, v24, v%d, vcc" % (MR + i, MR + i))
    for i in range(8):
        a("v_cvt_pk_bf16_f32 v%d, v%d, v%d" % (PQ + i, MR + 2 * i, MR + 2 * i + 1))
    a("v_and_b32 v26, 15, v1")
    a("v_lshrrev_b32 v27, 2, v26")
    a("v_and_b32 v26, 3, v26")
    a("v_lshlrev_b32 v26, 3, v26")
    a("v_lshl_add_u32 v27, v4, 2, v27")
    a("v_lshl_add_u32 v26, v27, 6, v26")
    a("v_bfe_u32 v27, v1, 4, 1")
    a("v_lshl_add_u32 v26, v27, 5, v26")
    a("v_add_u32 v26, s13, v26")
    FA = 144
    for sg in range(2):
        for s in range(2):
            base = FA + 8 * sg + 4 * s
            a("ds_read_b64_tr_b16 %s, v26 offset:%d" % (vr(base, 2), sg * 2048 + s * 1024))
            a("ds_read_b64_tr_b16 %s, v26 offset:%d" % (vr(base + 2, 2), sg * 2048 + s * 1024 + 512))
    a("s_waitcnt lgkmcnt(0)")
    for sg in range(2):
        dst = QA if sg == 0 else KA
        a("v_mfma_f32_32x32x16_bf16 %s, %s, %s, 0" % (vr(dst, 16), vr(FA + 8 * sg, 4), vr(PQ, 4)))
        a("v_mfma_f32_32x32x16_bf16 %s, %s, %s, %s" % (vr(dst, 16), vr(FA + 8 * sg + 4, 4), vr(PQ + 4, 4), vr(dst, 16)))
    a("s_barrier")
    a.nop(12)
    dstamp(a, name, 14)
    a("s_lshl_b32 s12, s3, 13")
    a("v_lshlrev_b32 v12, 5, v3")
    a("v_lshl_add_u32 v12, v4, 4, v12")
    a("v_add_u32 v12, s12, v12")
    for sg in range(2):
        src = QA if sg == 0 else KA
        for q in range(4):
            a("ds_write_b128 v12, %s offset:%d" % (vr(src + 4 * q, 4), (2 * sg + (q >> 1)) * 2048 + (q & 1) * 1024))
    a("s_waitcnt lgkmcnt(0)")
    a("s_barrier")
    a("v_lshlrev_b32 v12, 2, v0")
    for i in range(8):
        for w in range(4):
            a("ds_read_b32 v%d, v12 offset:%d" % (64 + 4 * i + w, w * 8192 + i * 1024))
    a("s_lshl_b32 s12, s5, 13")
    for i in range(8):
        a("s_waitcnt lgkmcnt(%d)" % min(15, 28 - 4 * i))
        b = 64 + 4 * i
        a("v_add_f32 v%d, v%d, v%d" % (b, b, b + 1))
        a("v_add_f32 v%d, v%d, v%d" % (b + 2, b + 2, b + 3))
        a("v_add_f32 v%d, v%d, v%d" % (b, b, b + 2))
        a("buffer_atomic_add_f32 v%d, v12, s[56:59], s12 offen offset:%d sc1" % (b, (i & 3) * 1024))
        if i == 3:
            a("s_add_u32 s12, s12, 4096")
    a("s_and_b32 s12, s2, 15")
    a("s_lshl_b32 s12, s12, 7")
    a("s_add_u32 s12, s12, %d" % C_KVS(layer))
    a("s_mov_b32 s13, %d" % C_KV(layer))
    signal2(a, 72, "s12", "s13", 16)

def tile64(a):
    a("s_and_b32 s4, s2, 7")
    a("s_lshr_b32 s5, s2, 3")
    a("s_mul_hi_u32 s6, s5, 0x24924925")
    a("s_mul_i32 s7, s6, 7")
    a("s_sub_u32 s5, s5, s7")
    a("s_lshl_b32 s4, s4, 2")
    a("s_add_u32 s4, s4, s6")

def gen_k2(a, layer):
    name = "k2l%d" % layer
    a("s_cmp_ge_u32 s2, 224")
    a("s_cbranch_scc1 %s_end" % name)
    tile64(a)
    srd(a, 40, P_WS, NXB, WS_XF if layer == 0 else WS_X2)
    srd(a, 44, P_WS, 14 * 32768, WS_WO)
    srd(a, 48, P_WS, 4 << 20, WS_PHIQ[layer])
    srd(a, 52, P_WS, NXB, WS_X1[layer])
    srd(a, 56, P_WS, 131072, WS_KVA[layer])
    a("v_lshlrev_b32 v9, 4, v1")
    a("s_and_b32 s6, s3, 1")
    a("s_lshr_b32 s7, s3, 1")
    a("s_lshl_b32 s8, s4, 1")
    a("s_add_u32 s8, s8, s6")
    a("s_lshl_b32 s12, s5, 16")
    a("s_lshl_b32 s13, s3, 14")
    a("s_add_u32 s12, s12, s13")
    a("s_add_u32 s13, s13, 65536")
    for i in range(16):
        a("s_add_u32 s14, s12, %d" % (1024 * i))
        a("s_add_u32 m0, s13, %d" % (1024 * i))
        a.nop(1)
        a("buffer_load_dwordx4 v9, s[44:47], s14 offen lds")
    a("s_lshl_b32 s9, s5, 1")
    a("s_add_u32 s9, s9, s7")
    a("s_mul_i32 s12, s8, 28672")
    a("s_lshl_b32 s14, s9, 11")
    a("s_add_u32 s12, s12, s14")
    dstamp(a, name, 10)
    a("s_mov_b32 s13, %d" % C_KV(layer))
    wait_cnt(a, 72, "s13", 1, 16)
    dstamp(a, name, 11)
    a("buffer_load_dwordx4 v[40:43], v9, s[40:43], s12 offen")
    a("buffer_load_dwordx4 v[44:47], v9, s[40:43], s12 offen offset:1024")
    a("s_lshl_b32 s9, s8, 4")
    a("s_lshl_b32 s10, s7, 3")
    a("s_add_u32 s9, s9, s10")
    a("s_lshl_b32 s9, s9, 12")
    a("s_lshl_b32 s10, s7, 16")
    a("v_lshlrev_b32 v8, 5, v1")
    PH = 64; RAW = [192, 224]; KVB = 48
    def raw(hh):
        for s in range(4):
            for u in range(2):
                a("buffer_load_dwordx4 %s, v8, s[56:59], s10 offen offset:%d" % (vr(RAW[hh & 1] + 8 * s + 4 * u, 4), (s & 1) * 2048 + 16 * u))
            if s & 1:
                a("s_add_u32 s10, s10, 4096")
    raw(0)
    for hh in range(8):
        for s in range(4):
            a("buffer_load_dwordx4 %s, v9, s[48:51], s9 offen offset:%d" % (vr(PH + 16 * hh + 4 * s, 4), 1024 * s))
        a("s_add_u32 s9, s9, 4096")
        if hh == 0:
            raw(1)
    ACC = 16; OF = 32
    a("s_lshl_b32 s11, s6, 15")
    a("s_lshl_b32 s13, s7, 14")
    a("s_add_u32 s11, s11, s13")
    a("v_add_u32 v10, s11, v9")
    for hh in range(8):
        if hh == 0:
            n = 8 + 28
        elif hh == 1:
            n = 24 + 8
        else:
            n = 8 if hh < 7 else 0
        a("s_waitcnt vmcnt(%d)" % n)
        R = RAW[hh & 1]
        for i in range(16):
            a("v_cvt_pk_bf16_f32 v%d, v%d, v%d" % (KVB + i, R + 2 * i, R + 2 * i + 1))
        if hh + 2 < 8:
            raw(hh + 2)
        else:
            a.nop(2)
        for s in range(4):
            a("v_mfma_f32_32x32x16_bf16 %s, %s, %s, %s" % (vr(ACC, 16), vr(KVB + 4 * s, 4), vr(PH + 16 * hh + 4 * s, 4), "0" if s == 0 else vr(ACC, 16)))
        a.nop(16)
        a("v_mov_b32 v11, v%d" % (ACC + 12))
        a("v_mov_b32 v12, v%d" % (ACC + 12))
        a.nop(2)
        a("v_permlane32_swap_b32 v11, v12")
        a.nop(1)
        a("v_add_f32 v12, %s, v12" % f2u(1e-6))
        a("v_rcp_f32 v12, v12")
        a.nop(1)
        for i in range(16):
            a("v_mul_f32 v%d, v12, v%d" % (ACC + i, ACC + i))
        for i in range(8):
            a("v_cvt_pk_bf16_f32 v%d, v%d, v%d" % (OF + i, ACC + 2 * i, ACC + 2 * i + 1))
        a("ds_write_b128 v10, %s offset:%d" % (vr(OF, 4), hh * 2048))
        a("ds_write_b128 v10, %s offset:%d" % (vr(OF + 4, 4), hh * 2048 + 1024))
    a("s_waitcnt vmcnt(0) lgkmcnt(0)")
    a("s_barrier")
    dstamp(a, name, 12)
    a("s_lshl_b32 s11, s6, 15")
    a("v_add_u32 v10, s11, v9")
    a("s_lshl_b32 s11, s7, 15")
    a("s_add_u32 s11, s11, 65536")
    a("v_add_u32 v11, s11, v9")
    NP = 6
    def rd(i):
        b = 64 + 8 * (i % NP)
        a("ds_read_b128 %s, v10 offset:%d" % (vr(b, 4), 1024 * i))
        a("ds_read_b128 %s, v11 offset:%d" % (vr(b + 4, 4), 1024 * i))
    for i in range(NP - 1):
        rd(i)
    for i in range(32):
        if i + NP - 1 < 32:
            rd(i + NP - 1)
            a("s_waitcnt lgkmcnt(%d)" % (2 * (NP - 1)))
        else:
            a("s_waitcnt lgkmcnt(%d)" % (2 * (31 - i)))
        b = 64 + 8 * (i % NP)
        a("v_mfma_f32_32x32x16_bf16 %s, %s, %s, %s" % (vr(ACC, 16), vr(b + 4, 4), vr(b, 4), "0" if i == 0 else vr(ACC, 16)))
    dstamp(a, name, 13)
    unswap(a, 40)
    a.nop(12)
    for g in range(4):
        for e in range(2):
            src = 40 + 2 * g + e
            i0 = ACC + 4 * g + 2 * e
            a("v_lshlrev_b32 v14, 16, v%d" % src)
            a("v_and_b32 v15, 0xffff0000, v%d" % src)
            a("v_add_f32 v%d, v%d, v14" % (i0, i0))
            a("v_add_f32 v%d, v%d, v15" % (i0 + 1, i0 + 1))
            a("v_cvt_pk_bf16_f32 v%d, v%d, v%d" % (src, i0, i0 + 1))
    swap_store(a, 40, 9, 52, "s12", 0, " sc1")
    a("s_lshr_b32 s12, s4, 1")
    a("s_lshl_b32 s12, s12, 2")
    a("s_add_u32 s12, s12, %d" % C_23(layer))
    signal(a, "s12")
    a.label("%s_end" % name)

def gen_k3(a, layer):
    name = "k3l%d" % layer
    a("s_cmp_ge_u32 s2, 224")
    a("s_cbranch_scc1 %s_end" % name)
    a("s_and_b32 s4, s2, 7")
    a("s_lshr_b32 s5, s2, 3")
    a("s_lshr_b32 s6, s5, 1")
    a("s_and_b32 s5, s5, 1")
    a("s_lshl_b32 s4, s4, 1")
    a("s_add_u32 s4, s4, s5")
    a("s_mov_b32 s5, s6")
    srd(a, 40, P_WS, NXB, WS_X1[layer])
    srd(a, 44, P_WS, 56 * 28672, WS_W1)
    srd(a, 48, P_B1, F * 2)
    srd(a, 52, P_WS, S * F * 2, WS_H[layer])
    srd(a, 56, P_WS, 8192, WS_CS1)
    A0 = 64; ACC = 176; BF = 208
    a("v_lshlrev_b32 v9, 4, v1")
    a("s_lshl_b32 s6, s4, 2")
    a("s_add_u32 s6, s6, s3")
    a("s_mul_i32 s8, s5, %d" % (4 * 28672))
    a("s_lshl_b32 s10, s3, 10")
    a("s_add_u32 s8, s8, s10")
    for i in range(28):
        a("s_add_u32 s12, s8, %d" % (i * 4096))
        a("s_add_u32 m0, s10, %d" % (i * 4096))
        a.nop(1)
        a("buffer_load_dwordx4 v9, s[44:47], s12 offen lds")
    a("v_lshlrev_b32 v8, 3, v4")
    a("s_lshl_b32 s11, s5, 8")
    for t in range(4):
        for g in range(4):
            a("buffer_load_dwordx2 %s, v8, s[48:51], s11 offen offset:%d" % (vr(32 + 8 * t + 2 * g, 2), 64 * t + 16 * g))
    a("v_add_u32 v10, 57344, v9")
    a("v_lshlrev_b32 v7, 4, v4")
    a("s_lshl_b32 s14, s5, 9")
    a("s_lshl_b32 s12, s4, 2")
    a("s_add_u32 s12, s12, %d" % C_23(layer))
    dstamp(a, name, 10)
    wait_cnt(a, 72, "s12", 1, 14)
    dstamp(a, name, 11)
    a("s_mul_i32 s7, s6, 28672")
    for s in range(28):
        if s % 4 == 0 and s:
            a("s_add_u32 s7, s7, 4096")
        a("buffer_load_dwordx4 %s, v9, s[40:43], s7 offen offset:%d" % (vr(A0 + 4 * s, 4), 1024 * (s % 4)))
    a("v_mov_b32 v21, %s" % f2u(-2.0 * 0.7978845608028654 * LOG2E * 0.044715))
    C1 = -2.0 * 0.7978845608028654 * LOG2E
    a("s_mul_i32 s15, s6, %d" % (112 * 1024))
    a("s_lshl_b32 s13, s5, 13")
    a("s_add_u32 s15, s15, s13")
    a("s_add_u32 s63, s15, 4096")
    a("s_waitcnt vmcnt(28)")
    a("s_barrier")
    dstamp(a, name, 12)
    NB = 4
    seq = [(t, s) for t in range(4) for s in range(28)]
    def breads(idx):
        t, s = seq[idx]
        a("ds_read_b128 %s, v%d offset:%d" % (vr(BF + 4 * (idx % NB), 4), 10 if t >= 2 else 9, (t & 1) * 28672 + s * 1024))
    def epi_ops(t):
        ops = []
        acc = ACC + 16 * (t & 1)
        CSR = 224 + 16 * (t & 1)
        for i in range(16):
            g, e = i >> 2, i & 3
            braw = 32 + 8 * t + 2 * g + (e >> 1)
            x = acc + i
            tmp = 22 + (i & 1)
            if e & 1:
                ops.append("v_and_b32 v%d, 0xffff0000, v%d" % (tmp, braw))
            else:
                ops.append("v_lshlrev_b32 v%d, 16, v%d" % (tmp, braw))
            ops.append("v_fma_f32 v%d, v%d, v17, v%d" % (tmp, CSR + i, tmp))
            ops.append("v_fma_f32 v%d, v%d, v18, v%d" % (x, x, tmp))
            ops.append("v_mul_f32 v%d, v%d, v%d" % (tmp, x, x))
            ops.append("v_fmaak_f32 v%d, v21, v%d, %s" % (tmp, tmp, f2u(C1)))
            ops.append("v_mul_f32 v%d, v%d, v%d" % (tmp, x, tmp))
            ops.append("v_exp_f32 v%d, v%d" % (tmp, tmp))
            ops.append("s_nop 0")
            ops.append("v_add_f32 v%d, 1.0, v%d" % (tmp, tmp))
            ops.append("v_rcp_f32 v%d, v%d" % (tmp, tmp))
            ops.append("s_nop 0")
            ops.append("v_mul_f32 v%d, v%d, v%d" % (x, x, tmp))
        for i in range(8):
            ops.append("v_cvt_pk_bf16_f32 v%d, v%d, v%d" % (acc + i, acc + 2 * i, acc + 2 * i + 1))
        return ops
    pending = []
    for i in range(NB - 1):
        breads(i)
    for idx, (t, s) in enumerate(seq):
        if s == 0:
            for g in range(4):
                a("buffer_load_dwordx4 %s, v7, s[56:59], s14 offen offset:%d" % (vr(224 + 16 * (t & 1) + 4 * g, 4), 128 * t + 32 * g))
        w = ""
        if t == 0:
            w = "vmcnt(%d) " % (27 - s + 4)
        if idx + NB - 1 < len(seq):
            breads(idx + NB - 1)
            a("s_waitcnt %slgkmcnt(%d)" % (w, NB - 1))
        else:
            a("s_waitcnt %slgkmcnt(%d)" % (w, len(seq) - 1 - idx))
        b = BF + 4 * (idx % NB)
        acc = ACC + 16 * (t & 1)
        a("v_mfma_f32_32x32x16_bf16 %s, %s, %s, %s" % (vr(acc, 16), vr(b, 4), vr(A0 + 4 * s, 4), "0" if s == 0 else vr(acc, 16)))
        if pending and s >= 2:
            n = min(len(pending), 8)
            for o in pending[:n]:
                a(o)
            pending = pending[n:]
            if not pending:
                swap_store(a, ACC + 16 * ((t - 1) & 1), 9, 52, "s15" if t - 1 < 2 else "s63", 2048 * ((t - 1) & 1), " sc1")
        if s == 27:
            assert not pending
            if t == 0:
                ln_stats(a, A0, 14, 15, 16, 17, 18)
            pending = epi_ops(t)
            a("s_waitcnt vmcnt(%d)" % (2 if t >= 1 else 0))
            if t == 3:
                a.nop(16)
                for o in pending:
                    a(o)
                pending = []
                swap_store(a, ACC + 16 * (t & 1), 9, 52, "s63", 2048 * (t & 1), " sc1")
    dstamp(a, name, 13)
    a("s_lshl_b32 s12, s4, 2")
    a("s_add_u32 s12, s12, %d" % C_34(layer))
    signal(a, "s12")
    a.label("%s_end" % name)

def gen_k4(a, layer):
    name = "k4l%d" % layer
    a("s_cmp_ge_u32 s2, 224")
    a("s_cbranch_scc1 %s_end" % name)
    tile64(a)
    srd(a, 40, P_WS, S * F * 2, WS_H[layer])
    srd(a, 44, P_WS, 14 * 112 * 1024, WS_W2)
    srd(a, 48, P_WS, NXB, WS_X1[layer])
    if layer == 0:
        srd(a, 52, P_WS, NXB, WS_X2)
    else:
        srd(a, 52, P_OUT, NXB)
    srd(a, 56, P_B2, D * 2)
    ACC = 64; FR = 80
    a("v_lshlrev_b32 v9, 4, v1")
    a("s_and_b32 s6, s3, 1")
    a("s_lshr_b32 s7, s3, 1")
    a("s_lshl_b32 s8, s4, 1")
    a("s_add_u32 s8, s8, s6")
    a("s_mul_i32 s8, s8, %d" % (112 * 1024))
    a("s_lshl_b32 s9, s7, 11")
    a("s_add_u32 s8, s8, s9")
    a("s_lshl_b32 s10, s5, 1")
    a("s_add_u32 s10, s10, s6")
    a("s_mul_i32 s10, s10, %d" % (112 * 1024))
    a("s_add_u32 s10, s10, s9")
    a("s_lshl_b32 s12, s6, 12")
    a("s_add_u32 s12, s12, s9")
    NS = 6
    def dmaA(stage):
        slot = (stage % NS) * 16384
        for i in range(2):
            a("s_add_u32 s14, s8, %d" % (stage * 4096 + i * 1024))
            a("s_add_u32 m0, s12, %d" % (slot + i * 1024))
            a.nop(1)
            a("buffer_load_dwordx4 v9, s[40:43], s14 offen lds")
    def dmaB(stage):
        slot = (stage % NS) * 16384
        for i in range(2):
            a("s_add_u32 s14, s10, %d" % (stage * 4096 + i * 1024))
            a("s_add_u32 m0, s12, %d" % (slot + 8192 + i * 1024))
            a.nop(1)
            a("buffer_load_dwordx4 v9, s[44:47], s14 offen lds")
    for st in range(NS - 1):
        dmaB(st)
    a("s_lshl_b32 s13, s4, 1")
    a("s_add_u32 s13, s13, s6")
    a("s_lshl_b32 s15, s5, 1")
    a("s_add_u32 s15, s15, s7")
    a("s_mul_i32 s60, s13, 28672")
    a("s_lshl_b32 s61, s15, 11")
    a("s_add_u32 s60, s60, s61")
    a("v_lshlrev_b32 v12, 3, v4")
    a("s_lshl_b32 s61, s15, 6")
    for g in range(4):
        a("buffer_load_dwordx2 %s, v12, s[56:59], s61 offen offset:%d" % (vr(40 + 2 * g, 2), 16 * g))
    a("s_lshl_b32 s62, s6, 12")
    a("v_add_u32 v13, s62, v9")
    a("s_lshl_b32 s62, s7, 12")
    a("s_add_u32 s62, s62, 8192")
    a("v_add_u32 v14, s62, v9")
    a("v_add_u32 v15, 49152, v13")
    a("v_add_u32 v16, 49152, v14")
    a("s_lshr_b32 s62, s4, 1")
    a("s_lshl_b32 s62, s62, 2")
    a("s_add_u32 s62, s62, %d" % C_34(layer))
    dstamp(a, name, 10)
    wait_cnt(a, 72, "s62", 1, 14)
    dstamp(a, name, 11)
    a("buffer_load_dwordx4 v[32:35], v9, s[48:51], s60 offen")
    a("buffer_load_dwordx4 v[36:39], v9, s[48:51], s60 offen offset:1024")
    for st in range(NS - 1):
        dmaA(st)
    for st in range(28):
        slot = (st % NS) * 16384
        if st <= NS - 2:
            n = 2 * (NS - 2 - st) + 4 * st
        else:
            n = 4 * min(NS - 2, 27 - st)
        a("s_waitcnt vmcnt(%d)" % n)
        a("s_barrier")
        if st + NS - 1 < 28:
            dmaA(st + NS - 1)
            dmaB(st + NS - 1)
        for ks in range(4):
            if slot < 65536:
                a("ds_read_b128 %s, v13 offset:%d" % (vr(FR + 8 * ks, 4), slot + ks * 1024))
                a("ds_read_b128 %s, v14 offset:%d" % (vr(FR + 8 * ks + 4, 4), slot + ks * 1024))
            else:
                a("ds_read_b128 %s, v15 offset:%d" % (vr(FR + 8 * ks, 4), slot - 49152 + ks * 1024))
                a("ds_read_b128 %s, v16 offset:%d" % (vr(FR + 8 * ks + 4, 4), slot - 49152 + ks * 1024))
        for ks in range(4):
            a("s_waitcnt lgkmcnt(%d)" % (2 * (3 - ks)))
            a("v_mfma_f32_32x32x16_bf16 %s, %s, %s, %s" % (vr(ACC, 16), vr(FR + 8 * ks + 4, 4), vr(FR + 8 * ks, 4), "0" if (st == 0 and ks == 0) else vr(ACC, 16)))
    dstamp(a, name, 13)
    unswap(a, 32)
    a.nop(12)
    for g in range(4):
        for e in range(2):
            src = 32 + 2 * g + e
            bsrc = 40 + 2 * g + e
            i0 = ACC + 4 * g + 2 * e
            a("v_lshlrev_b32 v20, 16, v%d" % src)
            a("v_and_b32 v21, 0xffff0000, v%d" % src)
            a("v_lshlrev_b32 v22, 16, v%d" % bsrc)
            a("v_and_b32 v23, 0xffff0000, v%d" % bsrc)
            a("v_add_f32 v%d, v%d, v22" % (i0, i0))
            a("v_add_f32 v%d, v%d, v23" % (i0 + 1, i0 + 1))
            a("v_add_f32 v%d, v%d, v20" % (i0, i0))
            a("v_add_f32 v%d, v%d, v21" % (i0 + 1, i0 + 1))
            a("v_cvt_pk_bf16_f32 v%d, v%d, v%d" % (src, i0, i0 + 1))
    if layer == 0:
        swap_store(a, 32, 9, 52, "s60", 0, " sc1")
        a("s_lshr_b32 s12, s4, 1")
        a("s_lshl_b32 s12, s12, 2")
        a("s_add_u32 s12, s12, %d" % C_41)
        signal(a, "s12")
    else:
        a.nop(1)
        for p in range(2):
            b = 32 + 4 * p
            a("v_permlane32_swap_b32 v%d, v%d" % (b, b + 2))
            a("v_permlane32_swap_b32 v%d, v%d" % (b + 1, b + 3))
        a("s_lshl_b32 s62, s13, 5")
        a("v_add_u32 v17, s62, v3")
        a("v_mul_u32_u24 v17, 896, v17")
        a("v_lshl_add_u32 v17, v4, 4, v17")
        for p in range(2):
            a("buffer_store_dwordx4 %s, v17, s[52:55], s61 offen offset:%d" % (vr(32 + 4 * p, 4), 32 * p))
    a.label("%s_end" % name)

def main():
    a = Asm()
    prologue(a, KNAME, 256)
    srd(a, 72, P_WS, 8192, WS_CNT)
    srd(a, 76, P_DBG, 256)
    gen_k0(a)
    stamp(a, KNAME, 1)
    for layer in range(2):
        gen_k1(a, layer); stamp(a, KNAME, 2 + 4 * layer)
        gen_k2(a, layer); stamp(a, KNAME, 3 + 4 * layer)
        gen_k3(a, layer); stamp(a, KNAME, 4 + 4 * layer)
        gen_k4(a, layer); stamp(a, KNAME, 5 + 4 * layer)
    epilogue(a, KNAME)
    hdr = open("cdna_kernels/%s.s.ref" % NAME).read().split("\n")
    out = [l for l in hdr[:13]]
    out.append("; @launch kernel=%s grid=(256,1,1) block=(256,1,1) lds=%d" % (KNAME, 131072))
    out.append('.amdgcn_target "amdgcn-amd-amdhsa--gfx950"')
    out.append(".text")
    out.append(".globl %s" % KNAME)
    out += a.lines
    out.append('.section .rodata,"a"')
    out += [".p2align 6", ".amdhsa_kernel %s" % KNAME, "  .amdhsa_next_free_vgpr 256", "  .amdhsa_next_free_sgpr 100",
            "  .amdhsa_accum_offset 256", "  .amdhsa_group_segment_fixed_size 0", "  .amdhsa_kernarg_size 96",
            "  .amdhsa_user_sgpr_count 2", "  .amdhsa_user_sgpr_kernarg_segment_ptr 1", "  .amdhsa_system_sgpr_workgroup_id_x 1", ".end_amdhsa_kernel"]
    dst = sys.argv[1] if len(sys.argv) > 1 else "cdna_kernels/%s.s" % NAME
    open(dst, "w").write("\n".join(out) + "\n")

if __name__ == "__main__":
    main()
```

```python
import struct, sys, os
from gen import Asm, vr, sr, f2u, srd, xhalf_sum, xhalf_op, tr_addr, dma_lane_off, ln_stats, prologue, epilogue, stamp, LOG2E
from gen import P_AX, P_WQKV, P_WPHI, P_WO, P_BX, P_W1, P_B1, P_W2, P_B2, P_OUT, P_DBG, P_WS, NAME
S, D, H, DH, F = 2048, 448, 16, 28, 1792
KB = 1024
WS_XF   = 0
WS_X1   = [2 << 20, 4 << 20]
WS_X2   = 6 << 20
WS_PHIQ = [8 << 20, 12 << 20]
WS_KVA  = [16 << 20, (16 << 20) + 131072]
WS_CNT  = 17 << 20
WS_H    = [18 << 20, 26 << 20]
WS_WQKV = 34 << 20
WS_W1   = 36 << 20
WS_WO   = 38 << 20
WS_W2   = 39 << 20
WS_CSQ  = 41 << 20
WS_CS1  = WS_CSQ + 8192
NXB = S * D * 2
KNAME = "fused_kernel"
F_P0  = 0
F_KV  = lambda l: 1024 + 1024 * l
F_GO  = lambda l: 4096 + 2048 * l
C_23  = lambda l: 8192 + 2048 * l
C_34  = lambda l: 12288 + 2048 * l
C_41  = 16384
F_O   = lambda l: 20480 + 2048 * l

DET = os.environ.get("DET", "")
def dstamp(a, name, idx):
    if name == DET:
        stamp(a, KNAME, idx)

def signal(a, soff, keep=0):
    a("s_waitcnt vmcnt(%d) lgkmcnt(0)" % keep)
    a("s_barrier")
    l = a.newlabel("sig")
    a("s_cmp_eq_u32 s3, 0")
    a("s_cbranch_scc0 %s" % l)
    a("v_mov_b32 v5, s98")
    a("v_mov_b32 v6, 0")
    a("s_mov_b64 exec, 1")
    a("buffer_store_dword v5, v6, s[72:75], %s offen sc1" % soff)
    a("s_mov_b64 exec, -1")
    a.label(l)

def wait_cnt(a, srdn, soff, nsh, target, slp=3):
    l = a.newlabel("poll"); d = a.newlabel("pdone")
    a("s_cmp_eq_u32 s3, 3")
    a("s_cbranch_scc0 %s" % d)
    a("s_mov_b64 exec, 0x%x" % ((1 << nsh) - 1))
    a("v_lshlrev_b32 v6, 2, v1")
    a.label(l)
    a("buffer_load_dword v5, v6, s[72:75], %s offen sc1" % soff)
    a("s_waitcnt vmcnt(0)")
    a("v_cmp_ne_u32 vcc, s98, v5")
    a("s_cbranch_vccz %s_x" % d)
    a("s_sleep %d" % slp)
    a("s_branch %s" % l)
    a.label("%s_x" % d)
    a("s_mov_b64 exec, -1")
    a.label(d)
    a("s_barrier")

def wait_block(a, soff, nwords):
    l = a.newlabel("pb")
    a("v_lshlrev_b32 v6, 4, v1")
    a("v_lshlrev_b32 v7, 2, v1")
    a.label(l)
    a("buffer_load_dwordx4 v[12:15], v6, s[72:75], %s offen sc1" % soff)
    a("s_waitcnt vmcnt(0)")
    a("s_mov_b64 s[60:61], 0")
    for j in range(4):
        a("v_add_u32 v16, %d, v7" % j)
        a("v_cmp_gt_u32 s[62:63], %d, v16" % nwords) if nwords <= 64 else (a("s_movk_i32 s14, %d" % nwords), a("v_cmp_gt_u32 s[62:63], s14, v16"))
        a("v_cmp_ne_u32 vcc, s98, v%d" % (12 + j))
        a("s_and_b64 s[62:63], s[62:63], vcc")
        a("s_or_b64 s[60:61], s[60:61], s[62:63]")
    a("s_cmp_eq_u64 s[60:61], 0")
    a("s_cbranch_scc1 %s_x" % l)
    a("s_sleep 2")
    a("s_branch %s" % l)
    a.label("%s_x" % l)

def get_nonce(a):
    l = a.newlabel("non")
    a("v_mov_b32 v6, 0")
    a.label(l)
    a("buffer_load_dword v5, v6, s[76:79], 0 offen sc1")
    a("s_waitcnt vmcnt(0)")
    a("v_readfirstlane_b32 s98, v5")
    a.nop(3)
    a("s_cmp_lg_u32 s98, 0")
    a("s_cbranch_scc1 %s_x" % l)
    a("s_sleep 4")
    a("s_branch %s" % l)
    a.label("%s_x" % l)

def aggregator(a, layer):
    l = a.newlabel("agg")
    a("s_cmp_eq_u32 s2, 255")
    a("s_cbranch_scc0 %s" % l)
    a("s_cmp_eq_u32 s3, 3")
    a("s_cbranch_scc0 %s" % l)
    if layer == 0:
        a("s_mov_b32 s13, %d" % F_P0)
        wait_block(a, "s13", 238)
    a("s_mov_b32 s13, %d" % F_KV(layer))
    wait_block(a, "s13", 256)
    a("v_lshlrev_b32 v6, 7, v1")
    a("v_mov_b32 v5, s98")
    a("s_mov_b64 exec, 0xffff")
    a("s_mov_b32 s13, %d" % F_GO(layer))
    a("buffer_store_dword v5, v6, s[72:75], s13 offen sc1")
    a("s_mov_b64 exec, -1")
    a.label(l)

def ln_ops(A0, s, vs, vq, t0, t1):
    ops = []
    for r in range(4):
        x = A0 + 4 * s + r
        ops += ["v_lshlrev_b32 v%d, 16, v%d" % (t0, x), "v_and_b32 v%d, 0xffff0000, v%d" % (t1, x),
                "v_add_f32 v%d, v%d, v%d" % (vs, vs, t0), "v_fmac_f32 v%d, v%d, v%d" % (vq, t0, t0),
                "v_add_f32 v%d, v%d, v%d" % (vs, vs, t1), "v_fmac_f32 v%d, v%d, v%d" % (vq, t1, t1)]
    return ops

def ln_finish(a, vsum, vsq, vt, vmr, vrs):
    xhalf_sum(a, vsum, vt)
    xhalf_sum(a, vsq, vt)
    a("v_mul_f32 v%d, %s, v%d" % (vsum, f2u(1.0 / D), vsum))
    a("v_mul_f32 v%d, %s, v%d" % (vsq, f2u(1.0 / D), vsq))
    a("v_fma_f32 v%d, -v%d, v%d, v%d" % (vsq, vsum, vsum, vsq))
    a("v_max_f32 v%d, 0, v%d" % (vsq, vsq))
    a("v_add_f32 v%d, %s, v%d" % (vsq, f2u(1e-5), vsq))
    a("v_rsq_f32 v%d, v%d" % (vrs, vsq))
    a.nop(1)
    a("v_mul_f32 v%d, v%d, v%d" % (vmr, vsum, vrs))
    a("v_sub_f32 v%d, 0, v%d" % (vmr, vmr))

def swap_store(a, base, vaddr, s_srd, soff, off0, nt=""):
    a.nop(1)
    for p in range(2):
        b = base + 4 * p
        a("v_permlane32_swap_b32 v%d, v%d" % (b, b + 2))
        a("v_permlane32_swap_b32 v%d, v%d" % (b + 1, b + 3))
    for p in range(2):
        b = base + 4 * p
        a("buffer_store_dwordx4 %s, v%d, %s, %s offen offset:%d%s" % (vr(b, 4), vaddr, sr(s_srd), soff, off0 + 1024 * p, nt))

def unswap(a, base):
    for p in range(2):
        b = base + 4 * p
        a("v_permlane32_swap_b32 v%d, v%d" % (b, b + 2))
        a("v_permlane32_swap_b32 v%d, v%d" % (b + 1, b + 3))

def gen_k0(a):
    name = "k0"
    srd(a, 56, P_WS, 64 << 20, 0)
    a("v_lshlrev_b32 v9, 4, v1")
    a("s_cmp_eq_u32 s2, 0")
    a("s_cbranch_scc0 k0_nn")
    a("s_cmp_eq_u32 s3, 0")
    a("s_cbranch_scc0 k0_nn")
    a("s_memrealtime s[60:61]")
    a("s_waitcnt lgkmcnt(0)")
    a("s_or_b32 s60, s60, 1")
    a("v_mov_b32 v5, s60")
    a("v_mov_b32 v6, 0")
    a("buffer_store_dword v5, v6, s[76:79], 0 offen sc1")
    a.label("k0_nn")
    for r in range(4):
        a("v_mov_b32 v%d, 0" % (32 + r))
    a("s_cmp_lt_u32 s2, 48")
    a("s_cbranch_scc0 k0_nz")
    a("s_mul_hi_u32 s8, s2, 0x55555556")
    a("s_mul_i32 s10, s8, 3")
    a("s_sub_u32 s10, s2, s10")
    a("s_cmp_eq_u32 s10, 2")
    a("s_cbranch_scc1 k0_nz")
    a("s_lshl_b32 s8, s8, 13")
    a("s_lshl_b32 s10, s10, 17")
    a("s_add_u32 s8, s8, s10")
    a("s_lshl_b32 s10, s3, 11")
    a("s_add_u32 s8, s8, s10")
    a("s_add_u32 s8, s8, 0x%x" % WS_KVA[0])
    a("buffer_store_dwordx4 v[32:35], v9, s[56:59], s8 offen sc1")
    a("buffer_store_dwordx4 v[32:35], v9, s[56:59], s8 offen offset:1024 sc1")
    a.label("k0_nz")
    a.nop(2)
    a("s_cmp_ge_u32 s2, 238")
    a("s_cbranch_scc1 k0_end")
    tr_addr(a, 11, 12, 13)
    a("v_mov_b32 v19, 0x3f803f80")
    def wpath(lbl, ptr, size, stride, setup, cs, perm=False):
        a.label(lbl)
        srd(a, 44, ptr, size)
        setup()
        dma_lane_off(a, 7, stride, 8)
        a("s_mul_i32 s11, s3, %d" % (16 * stride))
        a("s_add_u32 s8, s8, s11")
        a("s_lshl_b32 s12, s3, 10")
        for i in range(7):
            a("s_add_u32 s11, s8, %d" % (i * 64 * stride))
            a("s_add_u32 m0, s12, %d" % (i * 4096))
            a.nop(1)
            a("buffer_load_dwordx4 v7, s[44:47], s11 offen lds")
        a("v_mov_b32 v20, 0")
        a("s_waitcnt vmcnt(0)")
        a("s_barrier")
        if not perm:
            a("s_mul_i32 s11, s3, 7168")
            a("v_add_u32 v12, s11, v11")
            a("s_add_u32 s9, s9, s11")
            for i in range(7):
                a("ds_read_b64_tr_b16 %s, v12 offset:%d" % (vr(32 + 4 * i, 2), 1024 * i))
                a("ds_read_b64_tr_b16 %s, v12 offset:%d" % (vr(34 + 4 * i, 2), 1024 * i + 256))
            a("s_waitcnt lgkmcnt(0)")
            for i in range(7):
                a("buffer_store_dwordx4 %s, v9, s[56:59], s9 offen sc1" % vr(32 + 4 * i, 4))
                a("s_add_u32 s9, s9, 1024")
            if cs:
                for i in range(28):
                    a("v_dot2_f32_bf16 v20, v%d, v19, v20" % (32 + i))
                a.nop(4)
                xhalf_sum(a, 20, 21)
                a("v_lshlrev_b32 v12, 2, v3")
                a("s_lshl_b32 s11, s3, 7")
                a("v_add_u32 v12, s11, v12")
                a("ds_write_b32 v12, v20 offset:28672")
                a("s_waitcnt lgkmcnt(0)")
                a("s_barrier")
                a("v_lshlrev_b32 v12, 2, v3")
                for w in range(4):
                    a("ds_read_b32 v%d, v12 offset:%d" % (22 + w, 28672 + 128 * w))
                a("s_waitcnt lgkmcnt(0)")
                a("v_add_f32 v22, v22, v23")
                a("v_add_f32 v24, v24, v25")
                a("v_add_f32 v22, v22, v24")
                a("buffer_store_dword v22, v12, s[56:59], s10 offen sc1")
        else:
            a("v_lshlrev_b32 v12, 8, v4")
            a("v_sub_u32 v12, v11, v12")
            a("s_mul_i32 s11, s3, %d" % (4 * 28 * 64))
            a("v_add_u32 v12, s11, v12")
            a("s_lshl_b32 s11, s3, 13")
            a("s_add_u32 s9, s9, s11")
            a("s_mov_b32 s60, 0")
            a("s_mov_b32 s61, -1")
            for hh in range(4):
                for s in range(2):
                    b = 32 + 8 * hh + 4 * s
                    ro = (28 * hh + 16 * s) * 64
                    a("ds_read_b64_tr_b16 %s, v12 offset:%d" % (vr(b, 2), ro))
                    a("ds_read_b64_tr_b16 %s, v12 offset:%d" % (vr(b + 2, 2), ro + 512))
            a("s_waitcnt lgkmcnt(0)")
            for hh in range(4):
                b = 32 + 8 * hh + 4
                a("v_cndmask_b32 v%d, v%d, 0, s[60:61]" % (b + 2, b + 2))
                a("v_cndmask_b32 v%d, v%d, 0, s[60:61]" % (b + 3, b + 3))
            for i in range(8):
                a("buffer_store_dwordx4 %s, v9, s[56:59], s9 offen sc1" % vr(32 + 4 * i, 4))
                a("s_add_u32 s9, s9, 1024")
        a("s_branch %s_end" % name)
    a("s_cmp_ge_u32 s2, 174")
    a("s_cbranch_scc1 k0_x")
    a("s_cmp_ge_u32 s2, 118")
    a("s_cbranch_scc1 k0_w2")
    a("s_cmp_ge_u32 s2, 104")
    a("s_cbranch_scc1 k0_wo")
    a("s_cmp_ge_u32 s2, 48")
    a("s_cbranch_scc1 k0_w1")
    def su_qkv():
        a("s_mul_hi_u32 s4, s2, 0x55555556")
        a("s_mul_i32 s5, s4, 3")
        a("s_sub_u32 s5, s2, s5")
        a("s_mul_i32 s8, s5, 896")
        a("s_mul_i32 s6, s4, 56")
        a("s_add_u32 s8, s8, s6")
        a("s_mul_i32 s9, s2, 28672")
        a("s_add_u32 s9, s9, 0x%x" % WS_WQKV)
        a("s_lshl_b32 s10, s2, 7")
        a("s_add_u32 s10, s10, 0x%x" % WS_CSQ)
    wpath("k0_qkv", P_WQKV, D * 3 * D * 2, 2688, su_qkv, True)
    def su_w1():
        a("s_sub_u32 s4, s2, 48")
        a("s_lshl_b32 s8, s4, 6")
        a("s_mul_i32 s9, s4, 28672")
        a("s_add_u32 s9, s9, 0x%x" % WS_W1)
        a("s_lshl_b32 s10, s4, 7")
        a("s_add_u32 s10, s10, 0x%x" % WS_CS1)
    wpath("k0_w1", P_W1, D * F * 2, 3584, su_w1, True)
    def su_wo():
        a("s_sub_u32 s4, s2, 104")
        a("s_lshl_b32 s8, s4, 6")
        a("s_lshl_b32 s9, s4, 15")
        a("s_add_u32 s9, s9, 0x%x" % WS_WO)
    wpath("k0_wo", P_WO, D * D * 2, 896, su_wo, False, perm=True)
    def su_w2():
        a("s_sub_u32 s4, s2, 118")
        a("s_lshr_b32 s5, s4, 2")
        a("s_and_b32 s6, s4, 3")
        a("s_lshl_b32 s8, s5, 6")
        a("s_mul_i32 s7, s6, %d" % (448 * 896))
        a("s_add_u32 s8, s8, s7")
        a("s_mul_i32 s9, s4, 28672")
        a("s_add_u32 s9, s9, 0x%x" % WS_W2)
    wpath("k0_w2", P_W2, F * D * 2, 896, su_w2, False)
    a.label("k0_x")
    srd(a, 44, P_AX, NXB)
    a("s_sub_u32 s4, s2, 174")
    a("s_mul_i32 s8, s4, 28672")
    a("s_lshl_b32 s12, s3, 10")
    a("s_add_u32 s11, s8, s12")
    for i in range(7):
        a("s_add_u32 m0, s12, %d" % (i * 4096))
        a.nop(1)
        a("buffer_load_dwordx4 v9, s[44:47], s11 offen lds")
        a("s_add_u32 s11, s11, 4096")
    a("v_mul_u32_u24 v12, 896, v3")
    a("v_lshl_add_u32 v12, v4, 4, v12")
    a("s_mul_i32 s11, s3, 224")
    a("v_add_u32 v12, s11, v12")
    a("s_mul_i32 s11, s3, 7168")
    a("s_add_u32 s9, s8, s11")
    a("s_waitcnt vmcnt(0)")
    a("s_barrier")
    for i in range(7):
        a("ds_read_b128 %s, v12 offset:%d" % (vr(32 + 4 * i, 4), 32 * i))
    a("s_waitcnt lgkmcnt(0)")
    for i in range(7):
        a("buffer_store_dwordx4 %s, v9, s[56:59], s9 offen sc1" % vr(32 + 4 * i, 4))
        a("s_add_u32 s9, s9, 1024")
    a.label("k0_end")
    dstamp(a, name, 10)
    a("s_waitcnt vmcnt(0)")
    dstamp(a, name, 11)
    get_nonce(a)
    a("s_lshl_b32 s8, s2, 2")
    signal(a, "s8")

def k1_pre(a, tag):
    a("s_lshr_b32 s8, s2, 4")
    srd(a, 44, P_WS, 48 * 28672, WS_WQKV)
    a("s_mul_i32 s8, s8, %d" % (3 * 28672))
    a("v_lshlrev_b32 v9, 4, v1")
    for w in range(4):
        a("s_cmp_eq_u32 s3, %d" % w)
        a("s_cbranch_scc0 %s_dw%d" % (tag, w))
        for i in range(21):
            j = 4 * i + w
            ks, t = j // 3, j % 3
            off = t * 28672 + ks * 1024
            a("s_add_u32 s11, s8, %d" % off)
            a("s_mov_b32 m0, %d" % (65536 + off))
            a.nop(1)
            a("buffer_load_dwordx4 v9, s[44:47], s11 offen lds")
        a.label("%s_dw%d" % (tag, w))

def gen_k1(a, layer):
    name = "k1l%d" % layer
    a("s_and_b32 s4, s2, 7")
    a("s_lshr_b32 s5, s2, 3")
    a("s_lshl_b32 s4, s4, 1")
    a("s_and_b32 s6, s5, 1")
    a("s_add_u32 s4, s4, s6")
    a("s_lshr_b32 s5, s5, 1")
    srd(a, 40, P_WS, NXB, WS_XF if layer == 0 else WS_X2)
    srd(a, 44, P_WS, 48 * 28672, WS_WQKV)
    srd(a, 48, P_WPHI, H * DH * DH * 2)
    srd(a, 52, P_WS, 4 << 20, WS_PHIQ[layer])
    srd(a, 56, P_WS, 131072, WS_KVA[layer])
    srd(a, 64, P_WS, 16384, WS_CSQ)
    A0 = 64; QA, KA, VA = 176, 192, 208; BF = 224
    a("v_lshlrev_b32 v9, 4, v1")
    a("s_lshl_b32 s6, s4, 2")
    a("s_add_u32 s6, s6, s3")
    a("v_lshlrev_b32 v8, 1, v3")
    a("v_mul_u32_u24 v7, 224, v4")
    a("v_add_u32 v8, v8, v7")
    a("s_mul_i32 s12, s5, 1568")
    a("v_add_u32 v8, s12, v8")
    a("v_mov_b32 v10, 0x40000000")
    a("v_cmp_gt_u32 vcc, 28, v3")
    a.nop(2)
    a("v_cndmask_b32 v8, v10, v8, vcc")
    a("v_cmp_eq_u32 vcc, 0, v4")
    a.nop(2)
    a("v_cndmask_b32 v7, v10, v8, vcc")
    for s in range(2):
        for j in range(8):
            d0 = 16 * s + 8 * (j >> 2) + (j & 3)
            src = 7 if (s == 1 and j >= 4) else 8
            a("buffer_load_ushort v%d, v%d, s[48:51], 0 offen offset:%d" % (32 + 8 * s + j, src, d0 * 56))
    a("s_mul_i32 s12, s5, 384")
    a("v_lshlrev_b32 v7, 4, v4")
    for g in range(4):
        a("buffer_load_dwordx4 %s, v7, s[64:67], s12 offen offset:%d" % (vr(240 + 4 * g, 4) if False else vr(16 + 4 * g, 4), 32 * g))
    for g in range(4):
        a("buffer_load_dwordx4 %s, v7, s[64:67], s12 offen offset:%d" % (vr(240 + 4 * g, 4), 128 + 32 * g))
    a("v_lshlrev_b32 v7, 2, v3")
    a("buffer_load_dword v56, v7, s[64:67], s12 offen offset:256")
    a("s_mov_b32 s60, 0")
    a("s_mov_b32 s61, -1")
    a("v_add_u32 v10, %d, v9" % (65536 + 57344))
    a("v_add_u32 v11, 65536, v9")
    dstamp(a, name, 10)
    if layer == 1:
        a("s_lshl_b32 s14, s4, 7")
        a("s_add_u32 s14, s14, %d" % C_41)
        wait_cnt(a, 72, "s14", 14, 0, 2)
    else:
        a("s_lshl_b32 s14, s4, 4")
        a("s_add_u32 s14, s14, %d" % (F_P0 + 174 * 4))
        wait_cnt(a, 72, "s14", 4, 0, 2)
    dstamp(a, name, 11)
    a("s_mul_i32 s7, s6, 28672")
    for s in range(28):
        if s % 4 == 0 and s:
            a("s_add_u32 s7, s7, 4096")
        a("buffer_load_dwordx4 %s, v9, s[40:43], s7 offen offset:%d" % (vr(A0 + 4 * s, 4), 1024 * (s % 4)))
    a("s_mul_i32 s13, s3, 5120")
    a("s_add_u32 s13, s13, 32768")
    def breads(step, setb):
        for t in range(3):
            a("ds_read_b128 %s, v%d offset:%d" % (vr(BF + 12 * setb + 4 * t, 4) if False else vr(BFs[setb] + 4 * t, 4), 10 if t == 2 else 11, (t & 1) * 28672 + step * 1024))
    BFs = [224, 2]
    BFs = [224, 48 + 0]
    a("s_waitcnt vmcnt(28)")
    for j in range(8):
        a("v_lshl_or_b32 v%d, v%d, 16, v%d" % (48 + j, 33 + 2 * j, 32 + 2 * j))
    BFs = [224, 32]
    a("v_mov_b32 v14, 0")
    a("v_mov_b32 v15, 0")
    a("s_barrier")
    dstamp(a, name, 12)
    breads(0, 0)
    for s in range(28):
        sb = s & 1
        if s + 1 < 28:
            breads(s + 1, sb ^ 1)
            a("s_waitcnt vmcnt(%d) lgkmcnt(3)" % (27 - s))
        else:
            a("s_waitcnt vmcnt(0) lgkmcnt(0)")
        b = BFs[sb]
        x = A0 + 4 * s
        c = "0" if s == 0 else None
        lo = ln_ops(A0, s, 14, 15, 57, 58)
        a("v_mfma_f32_32x32x16_bf16 %s, %s, %s, %s" % (vr(QA, 16), vr(b, 4), vr(x, 4), c or vr(QA, 16)))
        for o in lo[:8]: a(o)
        a("v_mfma_f32_32x32x16_bf16 %s, %s, %s, %s" % (vr(KA, 16), vr(b + 4, 4), vr(x, 4), c or vr(KA, 16)))
        for o in lo[8:16]: a(o)
        a("v_mfma_f32_32x32x16_bf16 %s, %s, %s, %s" % (vr(VA, 16), vr(x, 4), vr(b + 8, 4), c or vr(VA, 16)))
        for o in lo[16:]: a(o)
    ln_finish(a, 14, 15, 57, 58, 59)
    a("v_lshlrev_b32 v12, 2, v3")
    a("v_add_u32 v12, s13, v12")
    a("ds_write_b32 v12, v59 offset:4096")
    a("ds_write_b32 v12, v58 offset:4224")
    dstamp(a, name, 13)
    a("v_lshlrev_b32 v13, 4, v4")
    a("v_add_u32 v13, s13, v13")
    a.nop(8)
    CS = 64; PK = 80; PQ = 96; EP = 112; EM = 128
    def feature_map(acc, cs):
        for i in range(16):
            a("v_mul_f32 v%d, v58, v%d" % (CS + i, cs + i))
            a("v_fma_f32 v%d, v%d, v59, v%d" % (CS + i, acc + i, CS + i))
        for i in range(8):
            a("v_cvt_pk_bf16_f32 v%d, v%d, v%d" % (PK + i, CS + 2 * i, CS + 2 * i + 1))
        a.nop(2)
        a("v_mfma_f32_32x32x16_bf16 %s, %s, %s, 0" % (vr(PQ, 16), vr(48, 4), vr(PK, 4)))
        a("v_mfma_f32_32x32x16_bf16 %s, %s, %s, %s" % (vr(PQ, 16), vr(52, 4), vr(PK + 4, 4), vr(PQ, 16)))
        a("v_mov_b32 v24, 0xff7fffff")
        a("v_mov_b32 v25, 0x7f7fffff")
        a.nop(14)
        for i in range(4):
            a("v_cndmask_b32 v%d, v%d, v24, s[60:61]" % (26 + i, PQ + 12 + i))
            a("v_cndmask_b32 v%d, v%d, v25, s[60:61]" % (144 + i, PQ + 12 + i))
        a("v_max3_f32 v30, v%d, v%d, v%d" % (PQ, PQ + 1, PQ + 2))
        a("v_min3_f32 v31, v%d, v%d, v%d" % (PQ, PQ + 1, PQ + 2))
        for i in range(3, 11, 2):
            a("v_max3_f32 v30, v%d, v%d, v30" % (PQ + i, PQ + i + 1))
            a("v_min3_f32 v31, v%d, v%d, v31" % (PQ + i, PQ + i + 1))
        a("v_max_f32 v30, v%d, v30" % (PQ + 11))
        a("v_min_f32 v31, v%d, v31" % (PQ + 11))
        a("v_max3_f32 v30, v26, v27, v30")
        a("v_min3_f32 v31, v144, v145, v31")
        a("v_max3_f32 v30, v28, v29, v30")
        a("v_min3_f32 v31, v146, v147, v31")
        xhalf_op(a, "v_max_f32", 30, 12)
        xhalf_op(a, "v_min_f32", 31, 12)
        a("v_mov_b32 v24, %s" % f2u(LOG2E))
        a("v_mul_f32 v30, %s, v30" % f2u(-LOG2E))
        a("v_mul_f32 v31, %s, v31" % f2u(LOG2E))
        for i in range(16):
            a("v_fma_f32 v%d, v%d, v24, v30" % (EP + i, PQ + i))
            a("v_fma_f32 v%d, -v%d, v24, v31" % (EM + i, PQ + i))
        for i in range(16):
            a("v_exp_f32 v%d, v%d" % (EP + i, EP + i))
            a("v_exp_f32 v%d, v%d" % (EM + i, EM + i))
        a.nop(1)
        for i in range(12, 16):
            a("v_cndmask_b32 v%d, v%d, 0, s[60:61]" % (EP + i, EP + i))
            a("v_cndmask_b32 v%d, v%d, 0, s[60:61]" % (EM + i, EM + i))
        a("v_add_f32 v30, v%d, v%d" % (EP, EP + 1))
        a("v_add_f32 v31, v%d, v%d" % (EM, EM + 1))
        for i in range(2, 16):
            a("v_add_f32 v30, v%d, v30" % (EP + i))
            a("v_add_f32 v31, v%d, v31" % (EM + i))
        xhalf_sum(a, 30, 12)
        xhalf_sum(a, 31, 12)
        a("v_rcp_f32 v30, v30")
        a("v_rcp_f32 v31, v31")
        a.nop(1)
        for i in range(16):
            a("v_mul_f32 v%d, v30, v%d" % (EP + i, EP + i))
            a("v_mul_f32 v%d, v31, v%d" % (EM + i, EM + i))
        for i in range(8):
            a("v_cvt_pk_bf16_f32 v%d, v%d, v%d" % (EP + i, EP + 2 * i, EP + 2 * i + 1))
            a("v_cvt_pk_bf16_f32 v%d, v%d, v%d" % (EM + i, EM + 2 * i, EM + 2 * i + 1))
    feature_map(QA, 16)
    for i in range(8):
        a("v_mov_b32 v%d, v%d" % (224 + i, EP + i))
        a("v_mov_b32 v%d, v%d" % (232 + i, EM + i))
    feature_map(KA, 240)
    a("v_lshlrev_b32 v12, 6, v3")
    a("v_lshl_add_u32 v12, v4, 3, v12")
    a("v_add_u32 v12, s13, v12")
    for g in range(4):
        a("ds_write_b64 v12, %s offset:%d" % (vr(EP + 2 * g, 2), 16 * g))
        a("ds_write_b64 v12, %s offset:%d" % (vr(EM + 2 * g, 2), 2048 + 16 * g))
    stamp(a, name, 8)
    RS = 64; MR = 80
    for g in range(4):
        a("ds_read_b128 %s, v13 offset:%d" % (vr(RS + 4 * g, 4), 4096 + 32 * g))
        a("ds_read_b128 %s, v13 offset:%d" % (vr(MR + 4 * g, 4), 4224 + 32 * g))
    a("v_cmp_gt_u32 vcc, 28, v3")
    a("v_mov_b32 v24, 0")
    a("v_mov_b32 v25, 1.0")
    a("v_cmp_eq_u32 s[62:63], 28, v3")
    a.nop(2)
    a("v_cndmask_b32 v24, v24, v25, s[62:63]")
    a("s_waitcnt lgkmcnt(0)")
    for i in range(16):
        a("v_mul_f32 v%d, v56, v%d" % (MR + i, MR + i))
        a("v_fma_f32 v%d, v%d, v%d, v%d" % (MR + i, VA + i, RS + i, MR + i))
        a("v_cndmask_b32 v%d, v24, v%d, vcc" % (MR + i, MR + i))
    for i in range(8):
        a("v_cvt_pk_bf16_f32 v%d, v%d, v%d" % (PQ + i, MR + 2 * i, MR + 2 * i + 1))
    a("v_and_b32 v26, 15, v1")
    a("v_lshrrev_b32 v27, 2, v26")
    a("v_and_b32 v26, 3, v26")
    a("v_lshlrev_b32 v26, 3, v26")
    a("v_lshl_add_u32 v27, v4, 2, v27")
    a("v_lshl_add_u32 v26, v27, 6, v26")
    a("v_bfe_u32 v27, v1, 4, 1")
    a("v_lshl_add_u32 v26, v27, 5, v26")
    a("v_add_u32 v26, s13, v26")
    FA = 144
    for sg in range(2):
        for s in range(2):
            base = FA + 8 * sg + 4 * s
            a("ds_read_b64_tr_b16 %s, v26 offset:%d" % (vr(base, 2), sg * 2048 + s * 1024))
            a("ds_read_b64_tr_b16 %s, v26 offset:%d" % (vr(base + 2, 2), sg * 2048 + s * 1024 + 512))
    a("s_waitcnt lgkmcnt(0)")
    for sg in range(2):
        dst = QA if sg == 0 else KA
        a("v_mfma_f32_32x32x16_bf16 %s, %s, %s, 0" % (vr(dst, 16), vr(FA + 8 * sg, 4), vr(PQ, 4)))
        a("v_mfma_f32_32x32x16_bf16 %s, %s, %s, %s" % (vr(dst, 16), vr(FA + 8 * sg + 4, 4), vr(PQ + 4, 4), vr(dst, 16)))
    a("s_barrier")
    a.nop(12)
    dstamp(a, name, 14)
    a("s_lshl_b32 s12, s3, 13")
    a("v_lshlrev_b32 v12, 5, v1")
    a("v_add_u32 v12, s12, v12")
    for sg in range(2):
        src = QA if sg == 0 else KA
        for q in range(4):
            a("ds_write_b128 v12, %s offset:%d" % (vr(src + 4 * q, 4), (2 * sg + (q >> 1)) * 2048 + (q & 1) * 16))
    a("s_waitcnt lgkmcnt(0)")
    a("s_barrier")
    a("v_lshlrev_b32 v12, 2, v0")
    for i in range(8):
        for w in range(4):
            a("ds_read_b32 v%d, v12 offset:%d" % (64 + 4 * i + w, w * 8192 + i * 1024))
    a("s_lshl_b32 s12, s5, 13")
    for i in range(8):
        a("s_waitcnt lgkmcnt(%d)" % min(15, 28 - 4 * i))
        b = 64 + 4 * i
        a("v_add_f32 v%d, v%d, v%d" % (b, b, b + 1))
        a("v_add_f32 v%d, v%d, v%d" % (b + 2, b + 2, b + 3))
        a("v_add_f32 v%d, v%d, v%d" % (b, b, b + 2))
        a("buffer_atomic_add_f32 v%d, v12, s[56:59], s12 offen offset:%d sc1" % (b, (i & 3) * 1024))
        if i == 3:
            a("s_add_u32 s12, s12, 4096")
    a("s_lshl_b32 s12, s2, 2")
    a("s_add_u32 s12, s12, %d" % F_KV(layer))
    signal(a, "s12")
    aggregator(a, layer)
    k2_pre(a)
    srd(a, 52, P_WS, 2 << 20, WS_PHIQ[layer])
    a("s_and_b32 s13, s2, 15")
    a("s_lshl_b32 s13, s13, 7")
    a("s_add_u32 s13, s13, %d" % F_GO(layer))
    a("v_lshlrev_b32 v8, 5, v1")
    a("s_lshl_b32 s10, s5, 13")
    wait_cnt(a, 72, "s13", 1, 0, 3)
    for f in range(4):
        for u in range(2):
            a("buffer_load_dwordx4 %s, v8, s[56:59], s10 offen offset:%d" % (vr(64 + 8 * f + 4 * u, 4), (f & 1) * 2048 + 16 * u))
        if f == 1:
            a("s_add_u32 s10, s10, 4096")
    a("s_waitcnt vmcnt(0)")
    for i in range(16):
        a("v_cvt_pk_bf16_f32 v%d, v%d, v%d" % (96 + i, 64 + 2 * i, 64 + 2 * i + 1))
    a.nop(2)
    for f in range(4):
        a("v_mfma_f32_32x32x16_bf16 %s, %s, %s, %s" % (vr(176, 16), vr(96 + 4 * f, 4), vr(224 + 4 * f, 4), "0" if f == 0 else vr(176, 16)))
    a.nop(16)
    a("v_mov_b32 v13, v188")
    a("v_mov_b32 v12, v188")
    a.nop(2)
    a("v_permlane32_swap_b32 v13, v12")
    a.nop(1)
    a("v_add_f32 v12, %s, v12" % f2u(1e-6))
    a("v_rcp_f32 v12, v12")
    a.nop(1)
    for i in range(16):
        a("v_mul_f32 v%d, v12, v%d" % (176 + i, 176 + i))
    for i in range(8):
        a("v_cvt_pk_bf16_f32 v%d, v%d, v%d" % (64 + i, 176 + 2 * i, 176 + 2 * i + 1))
    a("s_lshl_b32 s12, s6, 15")
    a("s_lshl_b32 s13, s5, 11")
    a("s_add_u32 s12, s12, s13")
    a("buffer_store_dwordx4 v[64:67], v9, s[52:55], s12 offen sc1")
    a("buffer_store_dwordx4 v[68:71], v9, s[52:55], s12 offen offset:1024 sc1")
    a("s_lshl_b32 s12, s4, 7")
    a("s_lshl_b32 s13, s5, 2")
    a("s_add_u32 s12, s12, s13")
    a("s_add_u32 s12, s12, %d" % F_O(layer))
    signal(a, "s12")

def tile64(a):
    a("s_and_b32 s4, s2, 7")
    a("s_lshr_b32 s5, s2, 3")
    a("s_mul_hi_u32 s6, s5, 0x24924925")
    a("s_mul_i32 s7, s6, 7")
    a("s_sub_u32 s5, s5, s7")
    a("s_lshl_b32 s4, s4, 2")
    a("s_add_u32 s4, s4, s6")

def grp_flag(a, base):
    a("s_lshr_b32 s62, s4, 1")
    a("s_lshl_b32 s62, s62, 7")
    a("s_and_b32 s63, s4, 1")
    a("s_mul_i32 s63, s63, 7")
    a("s_add_u32 s63, s63, s5")
    a("s_lshl_b32 s63, s63, 2")
    a("s_add_u32 s62, s62, s63")
    a("s_add_u32 s62, s62, %d" % base)

def k2_pre(a):
    a("s_lshr_b32 s13, s2, 3")
    a("s_mul_hi_u32 s14, s13, 0x24924925")
    a("s_mul_i32 s14, s14, 7")
    a("s_sub_u32 s13, s13, s14")
    srd(a, 44, P_WS, 14 * 32768, WS_WO)
    a("s_lshl_b32 s13, s13, 16")
    a("s_lshl_b32 s14, s3, 14")
    a("s_add_u32 s13, s13, s14")
    a("s_add_u32 s14, s14, 65536")
    for i in range(16):
        a("s_add_u32 s11, s13, %d" % (1024 * i))
        a("s_add_u32 m0, s14, %d" % (1024 * i))
        a.nop(1)
        a("buffer_load_dwordx4 v9, s[44:47], s11 offen lds")

def gen_k2(a, layer):
    name = "k2l%d" % layer
    a("s_cmp_ge_u32 s2, 224")
    a("s_cbranch_scc1 %s_end" % name)
    tile64(a)
    srd(a, 40, P_WS, NXB, WS_XF if layer == 0 else WS_X2)
    srd(a, 48, P_WS, 2 << 20, WS_PHIQ[layer])
    srd(a, 52, P_WS, NXB, WS_X1[layer])
    a("v_lshlrev_b32 v9, 4, v1")
    a("s_and_b32 s6, s3, 1")
    a("s_lshr_b32 s7, s3, 1")
    a("s_lshl_b32 s8, s4, 1")
    a("s_add_u32 s8, s8, s6")
    a("s_lshl_b32 s15, s5, 1")
    a("s_add_u32 s15, s15, s7")
    a("s_mul_i32 s12, s8, 28672")
    a("s_lshl_b32 s14, s15, 11")
    a("s_add_u32 s12, s12, s14")
    a("s_lshl_b32 s9, s4, 16")
    a("s_lshl_b32 s10, s3, 14")
    a("s_add_u32 s9, s9, s10")
    a("s_lshr_b32 s13, s4, 1")
    a("s_lshl_b32 s13, s13, 7")
    a("s_add_u32 s13, s13, %d" % F_O(layer))
    dstamp(a, name, 10)
    wait_cnt(a, 72, "s13", 16, 0, 2)
    dstamp(a, name, 11)
    for i in range(16):
        a("s_add_u32 s11, s9, %d" % (1024 * i))
        a("s_add_u32 m0, s10, %d" % (1024 * i))
        a.nop(1)
        a("buffer_load_dwordx4 v9, s[48:51], s11 offen lds")
    a("buffer_load_dwordx4 v[40:43], v9, s[40:43], s12 offen")
    a("buffer_load_dwordx4 v[44:47], v9, s[40:43], s12 offen offset:1024")
    a("s_lshl_b32 s11, s6, 15")
    a("v_add_u32 v10, s11, v9")
    a("s_lshl_b32 s11, s7, 15")
    a("s_add_u32 s11, s11, 65536")
    a("v_add_u32 v11, s11, v9")
    a("s_waitcnt vmcnt(2)")
    a("s_barrier")
    dstamp(a, name, 12)
    ACC = 16
    NP = 6
    def rd(i):
        b = 64 + 8 * (i % NP)
        a("ds_read_b128 %s, v10 offset:%d" % (vr(b, 4), 1024 * i))
        a("ds_read_b128 %s, v11 offset:%d" % (vr(b + 4, 4), 1024 * i))
    for i in range(NP - 1):
        rd(i)
    for i in range(32):
        if i + NP - 1 < 32:
            rd(i + NP - 1)
            a("s_waitcnt lgkmcnt(%d)" % (2 * (NP - 1)))
        else:
            a("s_waitcnt lgkmcnt(%d)" % (2 * (31 - i)))
        b = 64 + 8 * (i % NP)
        a("v_mfma_f32_32x32x16_bf16 %s, %s, %s, %s" % (vr(ACC, 16), vr(b + 4, 4), vr(b, 4), "0" if i == 0 else vr(ACC, 16)))
    dstamp(a, name, 13)
    a("s_barrier")
    a("s_waitcnt vmcnt(0)")
    unswap(a, 40)
    a.nop(12)
    for g in range(4):
        for e in range(2):
            src = 40 + 2 * g + e
            i0 = ACC + 4 * g + 2 * e
            a("v_lshlrev_b32 v14, 16, v%d" % src)
            a("v_and_b32 v15, 0xffff0000, v%d" % src)
            a("v_add_f32 v%d, v%d, v14" % (i0, i0))
            a("v_add_f32 v%d, v%d, v15" % (i0 + 1, i0 + 1))
            a("v_cvt_pk_bf16_f32 v%d, v%d, v%d" % (src, i0, i0 + 1))
    swap_store(a, 40, 9, 52, "s12", 0, " sc1")
    grp_flag(a, C_23(layer))
    signal(a, "s62")
    k3_pre(a)
    a.label("%s_end" % name)

def k3_pre(a):
    a("s_lshr_b32 s8, s2, 4")
    srd(a, 44, P_WS, 56 * 28672, WS_W1)
    a("s_mul_i32 s8, s8, %d" % (4 * 28672))
    a("s_lshl_b32 s10, s3, 10")
    a("s_add_u32 s8, s8, s10")
    for i in range(28):
        a("s_add_u32 s12, s8, %d" % (i * 4096))
        a("s_add_u32 m0, s10, %d" % (i * 4096))
        a.nop(1)
        a("buffer_load_dwordx4 v9, s[44:47], s12 offen lds")

def gen_k3(a, layer):
    name = "k3l%d" % layer
    a("s_cmp_ge_u32 s2, 224")
    a("s_cbranch_scc1 %s_end" % name)
    a("s_and_b32 s4, s2, 7")
    a("s_lshr_b32 s5, s2, 3")
    a("s_lshr_b32 s6, s5, 1")
    a("s_and_b32 s5, s5, 1")
    a("s_lshl_b32 s4, s4, 1")
    a("s_add_u32 s4, s4, s5")
    a("s_mov_b32 s5, s6")
    srd(a, 40, P_WS, NXB, WS_X1[layer])
    srd(a, 44, P_WS, 56 * 28672, WS_W1)
    srd(a, 48, P_B1, F * 2)
    srd(a, 52, P_WS, S * F * 2, WS_H[layer])
    srd(a, 56, P_WS, 8192, WS_CS1)
    A0 = 64; ACC = 176; BF = 208
    a("v_lshlrev_b32 v9, 4, v1")
    a("s_lshl_b32 s6, s4, 2")
    a("s_add_u32 s6, s6, s3")
    a("v_lshlrev_b32 v8, 3, v4")
    a("s_lshl_b32 s11, s5, 8")
    for t in range(4):
        for g in range(4):
            a("buffer_load_dwordx2 %s, v8, s[48:51], s11 offen offset:%d" % (vr(32 + 8 * t + 2 * g, 2), 64 * t + 16 * g))
    a("v_add_u32 v10, 57344, v9")
    a("v_lshlrev_b32 v7, 4, v4")
    a("s_lshl_b32 s14, s5, 9")
    a("s_lshl_b32 s12, s4, 7")
    a("s_add_u32 s12, s12, %d" % C_23(layer))
    dstamp(a, name, 10)
    wait_cnt(a, 72, "s12", 14, 0, 2)
    dstamp(a, name, 11)
    a("s_mul_i32 s7, s6, 28672")
    for s in range(28):
        if s % 4 == 0 and s:
            a("s_add_u32 s7, s7, 4096")
        a("buffer_load_dwordx4 %s, v9, s[40:43], s7 offen offset:%d" % (vr(A0 + 4 * s, 4), 1024 * (s % 4)))
    a("v_mov_b32 v21, %s" % f2u(-2.0 * 0.7978845608028654 * LOG2E * 0.044715))
    C1 = -2.0 * 0.7978845608028654 * LOG2E
    a("s_mul_i32 s15, s6, %d" % (112 * 1024))
    a("s_lshl_b32 s13, s5, 13")
    a("s_add_u32 s15, s15, s13")
    a("s_add_u32 s63, s15, 4096")
    a("v_mov_b32 v14, 0")
    a("v_mov_b32 v15, 0")
    a("s_waitcnt vmcnt(28)")
    a("s_barrier")
    dstamp(a, name, 12)
    NB = 4
    seq = [(t, s) for t in range(4) for s in range(28)]
    def breads(idx):
        t, s = seq[idx]
        a("ds_read_b128 %s, v%d offset:%d" % (vr(BF + 4 * (idx % NB), 4), 10 if t >= 2 else 9, (t & 1) * 28672 + s * 1024))
    def epi_ops(t):
        ops = []
        acc = ACC + 16 * (t & 1)
        CSR = 224 + 16 * (t & 1)
        for i in range(16):
            g, e = i >> 2, i & 3
            braw = 32 + 8 * t + 2 * g + (e >> 1)
            x = acc + i
            tmp = 22 + (i & 1)
            if e & 1:
                ops.append("v_and_b32 v%d, 0xffff0000, v%d" % (tmp, braw))
            else:
                ops.append("v_lshlrev_b32 v%d, 16, v%d" % (tmp, braw))
            ops.append("v_fma_f32 v%d, v%d, v17, v%d" % (tmp, CSR + i, tmp))
            ops.append("v_fma_f32 v%d, v%d, v18, v%d" % (x, x, tmp))
            ops.append("v_mul_f32 v%d, v%d, v%d" % (tmp, x, x))
            ops.append("v_fmaak_f32 v%d, v21, v%d, %s" % (tmp, tmp, f2u(C1)))
            ops.append("v_mul_f32 v%d, v%d, v%d" % (tmp, x, tmp))
            ops.append("v_exp_f32 v%d, v%d" % (tmp, tmp))
            ops.append("s_nop 0")
            ops.append("v_add_f32 v%d, 1.0, v%d" % (tmp, tmp))
            ops.append("v_rcp_f32 v%d, v%d" % (tmp, tmp))
            ops.append("s_nop 0")
            ops.append("v_mul_f32 v%d, v%d, v%d" % (x, x, tmp))
        for i in range(8):
            ops.append("v_cvt_pk_bf16_f32 v%d, v%d, v%d" % (acc + i, acc + 2 * i, acc + 2 * i + 1))
        return ops
    pending = []
    for i in range(NB - 1):
        breads(i)
    for idx, (t, s) in enumerate(seq):
        if s == 0:
            for g in range(4):
                a("buffer_load_dwordx4 %s, v7, s[56:59], s14 offen offset:%d" % (vr(224 + 16 * (t & 1) + 4 * g, 4), 128 * t + 32 * g))
        w = ""
        if t == 0:
            w = "vmcnt(%d) " % (27 - s + 4)
        if idx + NB - 1 < len(seq):
            breads(idx + NB - 1)
            a("s_waitcnt %slgkmcnt(%d)" % (w, NB - 1))
        else:
            a("s_waitcnt %slgkmcnt(%d)" % (w, len(seq) - 1 - idx))
        b = BF + 4 * (idx % NB)
        acc = ACC + 16 * (t & 1)
        a("v_mfma_f32_32x32x16_bf16 %s, %s, %s, %s" % (vr(acc, 16), vr(b, 4), vr(A0 + 4 * s, 4), "0" if s == 0 else vr(acc, 16)))
        if pending and s >= 2:
            n = min(len(pending), 8)
            for o in pending[:n]:
                a(o)
            pending = pending[n:]
            if not pending:
                swap_store(a, ACC + 16 * ((t - 1) & 1), 9, 52, "s15" if t - 1 < 2 else "s63", 2048 * ((t - 1) & 1), " sc1")
        if s == 27:
            assert not pending
            if t == 0:
                ln_stats(a, A0, 14, 15, 16, 17, 18)
            pending = epi_ops(t)
            a("s_waitcnt vmcnt(%d)" % (2 if t >= 1 else 0))
            if t == 3:
                a("s_barrier")
                a.nop(14)
                for o in pending:
                    a(o)
                pending = []
                swap_store(a, ACC + 16 * (t & 1), 9, 52, "s63", 2048 * (t & 1), " sc1")
    dstamp(a, name, 13)
    a("s_lshl_b32 s62, s4, 7")
    a("s_lshl_b32 s63, s5, 2")
    a("s_add_u32 s62, s62, s63")
    a("s_add_u32 s62, s62, %d" % C_34(layer))
    signal(a, "s62")
    k4_pre(a)
    a.label("%s_end" % name)

def k4_pre(a):
    a("s_lshr_b32 s13, s2, 3")
    a("s_mul_hi_u32 s14, s13, 0x24924925")
    a("s_mul_i32 s14, s14, 7")
    a("s_sub_u32 s13, s13, s14")
    srd(a, 44, P_WS, 14 * 112 * 1024, WS_W2)
    a("s_and_b32 s8, s3, 1")
    a("s_lshr_b32 s9, s3, 1")
    a("s_lshl_b32 s9, s9, 11")
    a("s_lshl_b32 s10, s13, 1")
    a("s_add_u32 s10, s10, s8")
    a("s_mul_i32 s10, s10, %d" % (112 * 1024))
    a("s_add_u32 s10, s10, s9")
    a("s_lshl_b32 s12, s8, 12")
    a("s_add_u32 s12, s12, s9")
    for st in range(5):
        for i in range(2):
            a("s_add_u32 s14, s10, %d" % (st * 4096 + i * 1024))
            a("s_add_u32 m0, s12, %d" % (st * 16384 + 8192 + i * 1024))
            a.nop(1)
            a("buffer_load_dwordx4 v9, s[44:47], s14 offen lds")

def gen_k4(a, layer):
    name = "k4l%d" % layer
    a("s_cmp_ge_u32 s2, 224")
    a("s_cbranch_scc1 %s_end" % name)
    tile64(a)
    srd(a, 40, P_WS, S * F * 2, WS_H[layer])
    srd(a, 44, P_WS, 14 * 112 * 1024, WS_W2)
    srd(a, 48, P_WS, NXB, WS_X1[layer])
    if layer == 0:
        srd(a, 52, P_WS, NXB, WS_X2)
    else:
        srd(a, 52, P_OUT, NXB)
    srd(a, 56, P_B2, D * 2)
    ACC = 64; FR = 80
    a("v_lshlrev_b32 v9, 4, v1")
    a("s_and_b32 s6, s3, 1")
    a("s_lshr_b32 s7, s3, 1")
    a("s_lshl_b32 s8, s4, 1")
    a("s_add_u32 s8, s8, s6")
    a("s_mul_i32 s8, s8, %d" % (112 * 1024))
    a("s_lshl_b32 s9, s7, 11")
    a("s_add_u32 s8, s8, s9")
    a("s_lshl_b32 s10, s5, 1")
    a("s_add_u32 s10, s10, s6")
    a("s_mul_i32 s10, s10, %d" % (112 * 1024))
    a("s_add_u32 s10, s10, s9")
    a("s_lshl_b32 s12, s6, 12")
    a("s_add_u32 s12, s12, s9")
    NS = 6
    def dmaA(stage):
        slot = (stage % NS) * 16384
        for i in range(2):
            a("s_add_u32 s14, s8, %d" % (stage * 4096 + i * 1024))
            a("s_add_u32 m0, s12, %d" % (slot + i * 1024))
            a.nop(1)
            a("buffer_load_dwordx4 v9, s[40:43], s14 offen lds")
    def dmaB(stage):
        slot = (stage % NS) * 16384
        for i in range(2):
            a("s_add_u32 s14, s10, %d" % (stage * 4096 + i * 1024))
            a("s_add_u32 m0, s12, %d" % (slot + 8192 + i * 1024))
            a.nop(1)
            a("buffer_load_dwordx4 v9, s[44:47], s14 offen lds")
    a("s_lshl_b32 s13, s4, 1")
    a("s_add_u32 s13, s13, s6")
    a("s_lshl_b32 s15, s5, 1")
    a("s_add_u32 s15, s15, s7")
    a("s_mul_i32 s60, s13, 28672")
    a("s_lshl_b32 s61, s15, 11")
    a("s_add_u32 s60, s60, s61")
    a("v_lshlrev_b32 v12, 3, v4")
    a("s_lshl_b32 s61, s15, 6")
    for g in range(4):
        a("buffer_load_dwordx2 %s, v12, s[56:59], s61 offen offset:%d" % (vr(40 + 2 * g, 2), 16 * g))
    a("s_lshl_b32 s62, s6, 12")
    a("v_add_u32 v13, s62, v9")
    a("s_lshl_b32 s62, s7, 12")
    a("s_add_u32 s62, s62, 8192")
    a("v_add_u32 v14, s62, v9")
    a("v_add_u32 v15, 49152, v13")
    a("v_add_u32 v16, 49152, v14")
    a("s_lshr_b32 s62, s4, 1")
    a("s_lshl_b32 s62, s62, 7")
    a("s_add_u32 s62, s62, %d" % C_34(layer))
    dstamp(a, name, 10)
    wait_cnt(a, 72, "s62", 14, 0, 2)
    dstamp(a, name, 11)
    a("buffer_load_dwordx4 v[32:35], v9, s[48:51], s60 offen")
    a("buffer_load_dwordx4 v[36:39], v9, s[48:51], s60 offen offset:1024")
    for st in range(NS - 1):
        dmaA(st)
    for st in range(28):
        slot = (st % NS) * 16384
        if st <= NS - 2:
            n = 2 * (NS - 2 - st) + 4 * st
        else:
            n = 4 * min(NS - 2, 27 - st)
        a("s_waitcnt vmcnt(%d)" % n)
        a("s_barrier")
        if st + NS - 1 < 28:
            dmaA(st + NS - 1)
            dmaB(st + NS - 1)
        for ks in range(4):
            if slot < 65536:
                a("ds_read_b128 %s, v13 offset:%d" % (vr(FR + 8 * ks, 4), slot + ks * 1024))
                a("ds_read_b128 %s, v14 offset:%d" % (vr(FR + 8 * ks + 4, 4), slot + ks * 1024))
            else:
                a("ds_read_b128 %s, v15 offset:%d" % (vr(FR + 8 * ks, 4), slot - 49152 + ks * 1024))
                a("ds_read_b128 %s, v16 offset:%d" % (vr(FR + 8 * ks + 4, 4), slot - 49152 + ks * 1024))
        for ks in range(4):
            a("s_waitcnt lgkmcnt(%d)" % (2 * (3 - ks)))
            a("v_mfma_f32_32x32x16_bf16 %s, %s, %s, %s" % (vr(ACC, 16), vr(FR + 8 * ks + 4, 4), vr(FR + 8 * ks, 4), "0" if (st == 0 and ks == 0) else vr(ACC, 16)))
    dstamp(a, name, 13)
    a("s_barrier")
    unswap(a, 32)
    a.nop(12)
    for g in range(4):
        for e in range(2):
            src = 32 + 2 * g + e
            bsrc = 40 + 2 * g + e
            i0 = ACC + 4 * g + 2 * e
            a("v_lshlrev_b32 v20, 16, v%d" % src)
            a("v_and_b32 v21, 0xffff0000, v%d" % src)
            a("v_lshlrev_b32 v22, 16, v%d" % bsrc)
            a("v_and_b32 v23, 0xffff0000, v%d" % bsrc)
            a("v_add_f32 v%d, v%d, v22" % (i0, i0))
            a("v_add_f32 v%d, v%d, v23" % (i0 + 1, i0 + 1))
            a("v_add_f32 v%d, v%d, v20" % (i0, i0))
            a("v_add_f32 v%d, v%d, v21" % (i0 + 1, i0 + 1))
            a("v_cvt_pk_bf16_f32 v%d, v%d, v%d" % (src, i0, i0 + 1))
    if layer == 0:
        swap_store(a, 32, 9, 52, "s60", 0, " sc1")
        grp_flag(a, C_41)
        signal(a, "s62")
        k1_pre(a, "k1pa")
        a("s_branch k4l0_done")
    else:
        a.nop(1)
        for p in range(2):
            b = 32 + 4 * p
            a("v_permlane32_swap_b32 v%d, v%d" % (b, b + 2))
            a("v_permlane32_swap_b32 v%d, v%d" % (b + 1, b + 3))
        a("s_lshl_b32 s62, s13, 5")
        a("v_add_u32 v17, s62, v3")
        a("v_mul_u32_u24 v17, 896, v17")
        a("v_lshl_add_u32 v17, v4, 4, v17")
        for p in range(2):
            a("buffer_store_dwordx4 %s, v17, s[52:55], s61 offen offset:%d" % (vr(32 + 4 * p, 4), 32 * p))
    a.label("%s_end" % name)
    if layer == 0:
        k1_pre(a, "k1pb")
        a.label("k4l0_done")

def main():
    a = Asm()
    prologue(a, KNAME, 256)
    srd(a, 72, P_WS, 32768, WS_CNT)
    srd(a, 76, P_DBG, 256)
    gen_k0(a)
    stamp(a, KNAME, 1)
    a("s_lshr_b32 s14, s2, 4")
    a("s_mul_i32 s14, s14, 12")
    wait_cnt(a, 72, "s14", 3, 0, 2)
    k1_pre(a, "k1p0")
    for layer in range(2):
        gen_k1(a, layer); stamp(a, KNAME, 2 + 4 * layer)
        gen_k2(a, layer); stamp(a, KNAME, 3 + 4 * layer)
        gen_k3(a, layer); stamp(a, KNAME, 4 + 4 * layer)
        gen_k4(a, layer); stamp(a, KNAME, 5 + 4 * layer)
    epilogue(a, KNAME)
    hdr = open("cdna_kernels/%s.s.ref" % NAME).read().split("\n")
    out = [l for l in hdr[:13]]
    out.append("; @launch kernel=%s grid=(256,1,1) block=(256,1,1) lds=%d" % (KNAME, 163840))
    out.append('.amdgcn_target "amdgcn-amd-amdhsa--gfx950"')
    out.append(".text")
    out.append(".globl %s" % KNAME)
    out += a.lines
    out.append('.section .rodata,"a"')
    out += [".p2align 6", ".amdhsa_kernel %s" % KNAME, "  .amdhsa_next_free_vgpr 256", "  .amdhsa_next_free_sgpr 100",
            "  .amdhsa_accum_offset 256", "  .amdhsa_group_segment_fixed_size 0", "  .amdhsa_kernarg_size 96",
            "  .amdhsa_user_sgpr_count 2", "  .amdhsa_user_sgpr_kernarg_segment_ptr 1", "  .amdhsa_system_sgpr_workgroup_id_x 1", ".end_amdhsa_kernel"]
    dst = sys.argv[1] if len(sys.argv) > 1 else "cdna_kernels/%s.s" % NAME
    open(dst, "w").write("\n".join(out) + "\n")

if __name__ == "__main__":
    main()
```

```python
import struct, sys, os
from gen import Asm, vr, sr, f2u, srd, xhalf_sum, xhalf_op, tr_addr, dma_lane_off, ln_stats, prologue, epilogue, stamp, LOG2E
from gen import P_AX, P_WQKV, P_WPHI, P_WO, P_BX, P_W1, P_B1, P_W2, P_B2, P_OUT, P_DBG, P_WS, NAME
S, D, H, DH, F = 2048, 448, 16, 28, 1792
KB = 1024
WS_XF   = 0
WS_X1   = [2 << 20, 4 << 20]
WS_X2   = 6 << 20
WS_PHIQ = [8 << 20, 12 << 20]
WS_KVA  = [16 << 20, (16 << 20) + 131072]
WS_CNT  = 17 << 20
WS_H    = [18 << 20, 26 << 20]
WS_WQKV = 34 << 20
WS_W1   = 36 << 20
WS_WO   = 38 << 20
WS_W2   = 39 << 20
WS_CSQ  = 41 << 20
WS_CS1  = WS_CSQ + 8192
NXB = S * D * 2
KNAME = "fused_kernel"
F_P0  = 0
F_KV  = lambda l: 1024 + 1024 * l
F_GO  = lambda l: 4096 + 2048 * l
C_23  = lambda l: 8192 + 2048 * l
C_34  = lambda l: 12288 + 2048 * l
C_41  = 16384
F_O   = lambda l: 20480 + 2048 * l

DET = os.environ.get("DET", "")
def dstamp(a, name, idx):
    if name == DET:
        stamp(a, KNAME, idx)

def signal(a, soff, keep=0):
    a("s_waitcnt vmcnt(%d) lgkmcnt(0)" % keep)
    a("s_barrier")
    l = a.newlabel("sig")
    a("s_cmp_eq_u32 s3, 0")
    a("s_cbranch_scc0 %s" % l)
    a("v_mov_b32 v5, s98")
    a("v_mov_b32 v6, 0")
    a("s_mov_b64 exec, 1")
    a("buffer_store_dword v5, v6, s[72:75], %s offen sc1" % soff)
    a("s_mov_b64 exec, -1")
    a.label(l)

def wait_cnt(a, srdn, soff, nsh, target, slp=3):
    l = a.newlabel("poll"); d = a.newlabel("pdone")
    a("s_cmp_eq_u32 s3, 3")
    a("s_cbranch_scc0 %s" % d)
    a("s_mov_b64 exec, 0x%x" % ((1 << nsh) - 1))
    a("v_lshlrev_b32 v6, 2, v1")
    a.label(l)
    a("buffer_load_dword v5, v6, s[72:75], %s offen sc1" % soff)
    a("s_waitcnt vmcnt(0)")
    a("v_cmp_ne_u32 vcc, s98, v5")
    a("s_cbranch_vccz %s_x" % d)
    a("s_sleep %d" % slp)
    a("s_branch %s" % l)
    a.label("%s_x" % d)
    a("s_mov_b64 exec, -1")
    a.label(d)
    a("s_barrier")

def wait_block(a, soff, nwords):
    l = a.newlabel("pb")
    a("v_lshlrev_b32 v6, 4, v1")
    a("v_lshlrev_b32 v7, 2, v1")
    a.label(l)
    a("buffer_load_dwordx4 v[12:15], v6, s[72:75], %s offen sc1" % soff)
    a("s_waitcnt vmcnt(0)")
    a("s_mov_b64 s[60:61], 0")
    for j in range(4):
        a("v_add_u32 v16, %d, v7" % j)
        a("v_cmp_gt_u32 s[62:63], %d, v16" % nwords) if nwords <= 64 else (a("s_movk_i32 s14, %d" % nwords), a("v_cmp_gt_u32 s[62:63], s14, v16"))
        a("v_cmp_ne_u32 vcc, s98, v%d" % (12 + j))
        a("s_and_b64 s[62:63], s[62:63], vcc")
        a("s_or_b64 s[60:61], s[60:61], s[62:63]")
    a("s_cmp_eq_u64 s[60:61], 0")
    a("s_cbranch_scc1 %s_x" % l)
    a("s_sleep 2")
    a("s_branch %s" % l)
    a.label("%s_x" % l)

def get_nonce(a):
    l = a.newlabel("non")
    a("v_mov_b32 v6, 0")
    a.label(l)
    a("buffer_load_dword v5, v6, s[76:79], 0 offen sc1")
    a("s_waitcnt vmcnt(0)")
    a("v_readfirstlane_b32 s98, v5")
    a.nop(3)
    a("s_cmp_lg_u32 s98, 0")
    a("s_cbranch_scc1 %s_x" % l)
    a("s_sleep 4")
    a("s_branch %s" % l)
    a.label("%s_x" % l)

def aggregator(a, layer):
    l = a.newlabel("agg")
    a("s_cmp_eq_u32 s2, 255")
    a("s_cbranch_scc0 %s" % l)
    a("s_cmp_eq_u32 s3, 3")
    a("s_cbranch_scc0 %s" % l)
    if layer == 0:
        a("s_mov_b32 s13, %d" % F_P0)
        wait_block(a, "s13", 238)
    a("s_mov_b32 s13, %d" % F_KV(layer))
    wait_block(a, "s13", 256)
    a("v_lshlrev_b32 v6, 7, v1")
    a("v_mov_b32 v5, s98")
    a("s_mov_b64 exec, 0xffff")
    a("s_mov_b32 s13, %d" % F_GO(layer))
    a("buffer_store_dword v5, v6, s[72:75], s13 offen sc1")
    a("s_mov_b64 exec, -1")
    a.label(l)

def ln_ops(A0, s, vs, vq, t0, t1):
    ops = []
    for r in range(4):
        x = A0 + 4 * s + r
        ops += ["v_lshlrev_b32 v%d, 16, v%d" % (t0, x), "v_and_b32 v%d, 0xffff0000, v%d" % (t1, x),
                "v_add_f32 v%d, v%d, v%d" % (vs, vs, t0), "v_fmac_f32 v%d, v%d, v%d" % (vq, t0, t0),
                "v_add_f32 v%d, v%d, v%d" % (vs, vs, t1), "v_fmac_f32 v%d, v%d, v%d" % (vq, t1, t1)]
    return ops

def ln_finish(a, vsum, vsq, vt, vmr, vrs):
    xhalf_sum(a, vsum, vt)
    xhalf_sum(a, vsq, vt)
    a("v_mul_f32 v%d, %s, v%d" % (vsum, f2u(1.0 / D), vsum))
    a("v_mul_f32 v%d, %s, v%d" % (vsq, f2u(1.0 / D), vsq))
    a("v_fma_f32 v%d, -v%d, v%d, v%d" % (vsq, vsum, vsum, vsq))
    a("v_max_f32 v%d, 0, v%d" % (vsq, vsq))
    a("v_add_f32 v%d, %s, v%d" % (vsq, f2u(1e-5), vsq))
    a("v_rsq_f32 v%d, v%d" % (vrs, vsq))
    a.nop(1)
    a("v_mul_f32 v%d, v%d, v%d" % (vmr, vsum, vrs))
    a("v_sub_f32 v%d, 0, v%d" % (vmr, vmr))

def swap_store(a, base, vaddr, s_srd, soff, off0, nt=""):
    a.nop(1)
    for p in range(2):
        b = base + 4 * p
        a("v_permlane32_swap_b32 v%d, v%d" % (b, b + 2))
        a("v_permlane32_swap_b32 v%d, v%d" % (b + 1, b + 3))
    for p in range(2):
        b = base + 4 * p
        a("buffer_store_dwordx4 %s, v%d, %s, %s offen offset:%d%s" % (vr(b, 4), vaddr, sr(s_srd), soff, off0 + 1024 * p, nt))

def unswap(a, base):
    for p in range(2):
        b = base + 4 * p
        a("v_permlane32_swap_b32 v%d, v%d" % (b, b + 2))
        a("v_permlane32_swap_b32 v%d, v%d" % (b + 1, b + 3))

def gen_k0(a):
    name = "k0"
    srd(a, 56, P_WS, 64 << 20, 0)
    a("v_lshlrev_b32 v9, 4, v1")
    a("s_cmp_eq_u32 s2, 0")
    a("s_cbranch_scc0 k0_nn")
    a("s_cmp_eq_u32 s3, 0")
    a("s_cbranch_scc0 k0_nn")
    a("s_memrealtime s[60:61]")
    a("s_waitcnt lgkmcnt(0)")
    a("s_or_b32 s60, s60, 1")
    a("v_mov_b32 v5, s60")
    a("v_mov_b32 v6, 0")
    a("buffer_store_dword v5, v6, s[76:79], 0 offen sc1")
    a.label("k0_nn")
    for r in range(4):
        a("v_mov_b32 v%d, 0" % (32 + r))
    a("s_cmp_lt_u32 s2, 48")
    a("s_cbranch_scc0 k0_nz")
    a("s_mul_hi_u32 s8, s2, 0x55555556")
    a("s_mul_i32 s10, s8, 3")
    a("s_sub_u32 s10, s2, s10")
    a("s_cmp_eq_u32 s10, 2")
    a("s_cbranch_scc1 k0_nz")
    a("s_lshl_b32 s8, s8, 13")
    a("s_lshl_b32 s10, s10, 17")
    a("s_add_u32 s8, s8, s10")
    a("s_lshl_b32 s10, s3, 11")
    a("s_add_u32 s8, s8, s10")
    a("s_add_u32 s8, s8, 0x%x" % WS_KVA[0])
    a("buffer_store_dwordx4 v[32:35], v9, s[56:59], s8 offen sc1")
    a("buffer_store_dwordx4 v[32:35], v9, s[56:59], s8 offen offset:1024 sc1")
    a.label("k0_nz")
    a.nop(2)
    a("s_cmp_ge_u32 s2, 238")
    a("s_cbranch_scc1 k0_end")
    tr_addr(a, 11, 12, 13)
    a("v_mov_b32 v19, 0x3f803f80")
    def wpath(lbl, ptr, size, stride, setup, cs, perm=False):
        a.label(lbl)
        srd(a, 44, ptr, size)
        setup()
        dma_lane_off(a, 7, stride, 8)
        a("s_mul_i32 s11, s3, %d" % (16 * stride))
        a("s_add_u32 s8, s8, s11")
        a("s_lshl_b32 s12, s3, 10")
        for i in range(7):
            a("s_add_u32 s11, s8, %d" % (i * 64 * stride))
            a("s_add_u32 m0, s12, %d" % (i * 4096))
            a.nop(1)
            a("buffer_load_dwordx4 v7, s[44:47], s11 offen lds")
        a("v_mov_b32 v20, 0")
        a("s_waitcnt vmcnt(0)")
        a("s_barrier")
        if not perm:
            a("s_mul_i32 s11, s3, 7168")
            a("v_add_u32 v12, s11, v11")
            a("s_add_u32 s9, s9, s11")
            for i in range(7):
                a("ds_read_b64_tr_b16 %s, v12 offset:%d" % (vr(32 + 4 * i, 2), 1024 * i))
                a("ds_read_b64_tr_b16 %s, v12 offset:%d" % (vr(34 + 4 * i, 2), 1024 * i + 256))
            a("s_waitcnt lgkmcnt(0)")
            for i in range(7):
                a("buffer_store_dwordx4 %s, v9, s[56:59], s9 offen sc1" % vr(32 + 4 * i, 4))
                a("s_add_u32 s9, s9, 1024")
            if cs:
                for i in range(28):
                    a("v_dot2_f32_bf16 v20, v%d, v19, v20" % (32 + i))
                a.nop(4)
                xhalf_sum(a, 20, 21)
                a("v_lshlrev_b32 v12, 2, v3")
                a("s_lshl_b32 s11, s3, 7")
                a("v_add_u32 v12, s11, v12")
                a("ds_write_b32 v12, v20 offset:28672")
                a("s_waitcnt lgkmcnt(0)")
                a("s_barrier")
                a("v_lshlrev_b32 v12, 2, v3")
                for w in range(4):
                    a("ds_read_b32 v%d, v12 offset:%d" % (22 + w, 28672 + 128 * w))
                a("s_waitcnt lgkmcnt(0)")
                a("v_add_f32 v22, v22, v23")
                a("v_add_f32 v24, v24, v25")
                a("v_add_f32 v22, v22, v24")
                a("buffer_store_dword v22, v12, s[56:59], s10 offen sc1")
        else:
            a("v_lshlrev_b32 v12, 8, v4")
            a("v_sub_u32 v12, v11, v12")
            a("s_mul_i32 s11, s3, %d" % (4 * 28 * 64))
            a("v_add_u32 v12, s11, v12")
            a("s_lshl_b32 s11, s3, 13")
            a("s_add_u32 s9, s9, s11")
            a("s_mov_b32 s60, 0")
            a("s_mov_b32 s61, -1")
            for hh in range(4):
                for s in range(2):
                    b = 32 + 8 * hh + 4 * s
                    ro = (28 * hh + 16 * s) * 64
                    a("ds_read_b64_tr_b16 %s, v12 offset:%d" % (vr(b, 2), ro))
                    a("ds_read_b64_tr_b16 %s, v12 offset:%d" % (vr(b + 2, 2), ro + 512))
            a("s_waitcnt lgkmcnt(0)")
            for hh in range(4):
                b = 32 + 8 * hh + 4
                a("v_cndmask_b32 v%d, v%d, 0, s[60:61]" % (b + 2, b + 2))
                a("v_cndmask_b32 v%d, v%d, 0, s[60:61]" % (b + 3, b + 3))
            for i in range(8):
                a("buffer_store_dwordx4 %s, v9, s[56:59], s9 offen sc1" % vr(32 + 4 * i, 4))
                a("s_add_u32 s9, s9, 1024")
        a("s_branch %s_end" % name)
    a("s_cmp_ge_u32 s2, 174")
    a("s_cbranch_scc1 k0_x")
    a("s_cmp_ge_u32 s2, 118")
    a("s_cbranch_scc1 k0_w2")
    a("s_cmp_ge_u32 s2, 104")
    a("s_cbranch_scc1 k0_wo")
    a("s_cmp_ge_u32 s2, 48")
    a("s_cbranch_scc1 k0_w1")
    def su_qkv():
        a("s_mul_hi_u32 s4, s2, 0x55555556")
        a("s_mul_i32 s5, s4, 3")
        a("s_sub_u32 s5, s2, s5")
        a("s_mul_i32 s8, s5, 896")
        a("s_mul_i32 s6, s4, 56")
        a("s_add_u32 s8, s8, s6")
        a("s_mul_i32 s9, s2, 28672")
        a("s_add_u32 s9, s9, 0x%x" % WS_WQKV)
        a("s_lshl_b32 s10, s2, 7")
        a("s_add_u32 s10, s10, 0x%x" % WS_CSQ)
    wpath("k0_qkv", P_WQKV, D * 3 * D * 2, 2688, su_qkv, True)
    def su_w1():
        a("s_sub_u32 s4, s2, 48")
        a("s_lshl_b32 s8, s4, 6")
        a("s_mul_i32 s9, s4, 28672")
        a("s_add_u32 s9, s9, 0x%x" % WS_W1)
        a("s_lshl_b32 s10, s4, 7")
        a("s_add_u32 s10, s10, 0x%x" % WS_CS1)
    wpath("k0_w1", P_W1, D * F * 2, 3584, su_w1, True)
    def su_wo():
        a("s_sub_u32 s4, s2, 104")
        a("s_lshl_b32 s8, s4, 6")
        a("s_lshl_b32 s9, s4, 15")
        a("s_add_u32 s9, s9, 0x%x" % WS_WO)
    wpath("k0_wo", P_WO, D * D * 2, 896, su_wo, False, perm=True)
    def su_w2():
        a("s_sub_u32 s4, s2, 118")
        a("s_lshr_b32 s5, s4, 2")
        a("s_and_b32 s6, s4, 3")
        a("s_lshl_b32 s8, s5, 6")
        a("s_mul_i32 s7, s6, %d" % (448 * 896))
        a("s_add_u32 s8, s8, s7")
        a("s_mul_i32 s9, s4, 28672")
        a("s_add_u32 s9, s9, 0x%x" % WS_W2)
    wpath("k0_w2", P_W2, F * D * 2, 896, su_w2, False)
    a.label("k0_x")
    srd(a, 44, P_AX, NXB)
    a("s_sub_u32 s4, s2, 174")
    a("s_mul_i32 s8, s4, 28672")
    a("s_lshl_b32 s12, s3, 10")
    a("s_add_u32 s11, s8, s12")
    for i in range(7):
        a("s_add_u32 m0, s12, %d" % (i * 4096))
        a.nop(1)
        a("buffer_load_dwordx4 v9, s[44:47], s11 offen lds")
        a("s_add_u32 s11, s11, 4096")
    a("v_mul_u32_u24 v12, 896, v3")
    a("v_lshl_add_u32 v12, v4, 4, v12")
    a("s_mul_i32 s11, s3, 224")
    a("v_add_u32 v12, s11, v12")
    a("s_mul_i32 s11, s3, 7168")
    a("s_add_u32 s9, s8, s11")
    a("s_waitcnt vmcnt(0)")
    a("s_barrier")
    for i in range(7):
        a("ds_read_b128 %s, v12 offset:%d" % (vr(32 + 4 * i, 4), 32 * i))
    a("s_waitcnt lgkmcnt(0)")
    for i in range(7):
        a("buffer_store_dwordx4 %s, v9, s[56:59], s9 offen sc1" % vr(32 + 4 * i, 4))
        a("s_add_u32 s9, s9, 1024")
    a.label("k0_end")
    dstamp(a, name, 10)
    a("s_waitcnt vmcnt(0)")
    dstamp(a, name, 11)
    get_nonce(a)
    a("s_lshl_b32 s8, s2, 2")
    signal(a, "s8")

def k1_pre(a, tag):
    a("s_lshr_b32 s8, s2, 4")
    srd(a, 44, P_WS, 48 * 28672, WS_WQKV)
    a("s_mul_i32 s8, s8, %d" % (3 * 28672))
    a("v_lshlrev_b32 v9, 4, v1")
    for w in range(4):
        a("s_cmp_eq_u32 s3, %d" % w)
        a("s_cbranch_scc0 %s_dw%d" % (tag, w))
        for i in range(21):
            j = 4 * i + w
            ks, t = j // 3, j % 3
            off = t * 28672 + ks * 1024
            a("s_add_u32 s11, s8, %d" % off)
            a("s_mov_b32 m0, %d" % (65536 + off))
            a.nop(1)
            a("buffer_load_dwordx4 v9, s[44:47], s11 offen lds")
        a.label("%s_dw%d" % (tag, w))

def gen_k1(a, layer):
    name = "k1l%d" % layer
    a("s_and_b32 s4, s2, 7")
    a("s_lshr_b32 s5, s2, 3")
    a("s_lshl_b32 s4, s4, 1")
    a("s_and_b32 s6, s5, 1")
    a("s_add_u32 s4, s4, s6")
    a("s_lshr_b32 s5, s5, 1")
    srd(a, 40, P_WS, NXB, WS_XF if layer == 0 else WS_X2)
    srd(a, 44, P_WS, 48 * 28672, WS_WQKV)
    srd(a, 48, P_WPHI, H * DH * DH * 2)
    srd(a, 52, P_WS, 4 << 20, WS_PHIQ[layer])
    srd(a, 56, P_WS, 131072, WS_KVA[layer])
    srd(a, 64, P_WS, 16384, WS_CSQ)
    A0 = 64; QA, KA, VA = 176, 192, 208; BF = 224
    a("v_lshlrev_b32 v9, 4, v1")
    a("s_lshl_b32 s6, s4, 2")
    a("s_add_u32 s6, s6, s3")
    a("v_lshlrev_b32 v8, 1, v3")
    a("v_mul_u32_u24 v7, 224, v4")
    a("v_add_u32 v8, v8, v7")
    a("s_mul_i32 s12, s5, 1568")
    a("v_add_u32 v8, s12, v8")
    a("v_mov_b32 v10, 0x40000000")
    a("v_cmp_gt_u32 vcc, 28, v3")
    a.nop(2)
    a("v_cndmask_b32 v8, v10, v8, vcc")
    a("v_cmp_eq_u32 vcc, 0, v4")
    a.nop(2)
    a("v_cndmask_b32 v7, v10, v8, vcc")
    for s in range(2):
        for j in range(8):
            d0 = 16 * s + 8 * (j >> 2) + (j & 3)
            src = 7 if (s == 1 and j >= 4) else 8
            a("buffer_load_ushort v%d, v%d, s[48:51], 0 offen offset:%d" % (32 + 8 * s + j, src, d0 * 56))
    a("s_mul_i32 s12, s5, 384")
    a("v_lshlrev_b32 v7, 4, v4")
    for g in range(4):
        a("buffer_load_dwordx4 %s, v7, s[64:67], s12 offen offset:%d" % (vr(240 + 4 * g, 4), 32 * g))
    for g in range(4):
        a("buffer_load_dwordx4 %s, v7, s[64:67], s12 offen offset:%d" % (vr(16 + 4 * g, 4), 128 + 32 * g))
    a("v_lshlrev_b32 v7, 2, v3")
    a("buffer_load_dword v56, v7, s[64:67], s12 offen offset:256")
    a("s_mov_b32 s60, 0")
    a("s_mov_b32 s61, -1")
    a("v_add_u32 v10, %d, v9" % (65536 + 57344))
    a("v_add_u32 v11, 65536, v9")
    dstamp(a, name, 10)
    if layer == 1:
        a("s_lshl_b32 s14, s4, 7")
        a("s_add_u32 s14, s14, %d" % C_41)
        wait_cnt(a, 72, "s14", 14, 0, 2)
    else:
        a("s_lshl_b32 s14, s4, 4")
        a("s_add_u32 s14, s14, %d" % (F_P0 + 174 * 4))
        wait_cnt(a, 72, "s14", 4, 0, 2)
    dstamp(a, name, 11)
    a("s_mul_i32 s7, s6, 28672")
    for s in range(28):
        if s % 4 == 0 and s:
            a("s_add_u32 s7, s7, 4096")
        a("buffer_load_dwordx4 %s, v9, s[40:43], s7 offen offset:%d" % (vr(A0 + 4 * s, 4), 1024 * (s % 4)))
    a("s_mul_i32 s13, s3, 5120")
    a("s_add_u32 s13, s13, 32768")
    def breads(step, setb):
        for t in range(3):
            a("ds_read_b128 %s, v%d offset:%d" % (vr(BF + 12 * setb + 4 * t, 4) if False else vr(BFs[setb] + 4 * t, 4), 10 if t == 2 else 11, (t & 1) * 28672 + step * 1024))
    BFs = [224, 2]
    BFs = [224, 48 + 0]
    a("s_waitcnt vmcnt(28)")
    for j in range(8):
        a("v_lshl_or_b32 v%d, v%d, 16, v%d" % (48 + j, 33 + 2 * j, 32 + 2 * j))
    BFs = [224, 32]
    a("v_mov_b32 v14, 0")
    a("v_mov_b32 v15, 0")
    a("s_barrier")
    dstamp(a, name, 12)
    breads(0, 0)
    for s in range(28):
        sb = s & 1
        if s + 1 < 28:
            breads(s + 1, sb ^ 1)
            a("s_waitcnt vmcnt(%d) lgkmcnt(3)" % (27 - s))
        else:
            a("s_waitcnt vmcnt(0) lgkmcnt(0)")
        b = BFs[sb]
        x = A0 + 4 * s
        c = "0" if s == 0 else None
        lo = ln_ops(A0, s, 14, 15, 57, 58)
        a("v_mfma_f32_32x32x16_bf16 %s, %s, %s, %s" % (vr(QA, 16), vr(b, 4), vr(x, 4), c or vr(QA, 16)))
        for o in lo[:8]: a(o)
        a("v_mfma_f32_32x32x16_bf16 %s, %s, %s, %s" % (vr(KA, 16), vr(b + 4, 4), vr(x, 4), c or vr(KA, 16)))
        for o in lo[8:16]: a(o)
        a("v_mfma_f32_32x32x16_bf16 %s, %s, %s, %s" % (vr(VA, 16), vr(x, 4), vr(b + 8, 4), c or vr(VA, 16)))
        for o in lo[16:]: a(o)
    ln_finish(a, 14, 15, 57, 58, 59)
    a("v_lshlrev_b32 v12, 2, v3")
    a("v_add_u32 v12, s13, v12")
    a("ds_write_b32 v12, v59 offset:4096")
    a("ds_write_b32 v12, v58 offset:4224")
    dstamp(a, name, 13)
    a("v_lshlrev_b32 v13, 4, v4")
    a("v_add_u32 v13, s13, v13")
    a.nop(8)
    CS = 64; PK = 80; PQ = 96; EP = 112; EM = 128
    def feature_map(acc, cs):
        for i in range(16):
            a("v_mul_f32 v%d, v58, v%d" % (CS + i, cs + i))
            a("v_fma_f32 v%d, v%d, v59, v%d" % (CS + i, acc + i, CS + i))
        for i in range(8):
            a("v_cvt_pk_bf16_f32 v%d, v%d, v%d" % (PK + i, CS + 2 * i, CS + 2 * i + 1))
        a.nop(2)
        a("v_mfma_f32_32x32x16_bf16 %s, %s, %s, 0" % (vr(PQ, 16), vr(48, 4), vr(PK, 4)))
        a("v_mfma_f32_32x32x16_bf16 %s, %s, %s, %s" % (vr(PQ, 16), vr(52, 4), vr(PK + 4, 4), vr(PQ, 16)))
        a("v_mov_b32 v24, 0xff7fffff")
        a("v_mov_b32 v25, 0x7f7fffff")
        a.nop(14)
        for i in range(4):
            a("v_cndmask_b32 v%d, v%d, v24, s[60:61]" % (26 + i, PQ + 12 + i))
            a("v_cndmask_b32 v%d, v%d, v25, s[60:61]" % (144 + i, PQ + 12 + i))
        a("v_max3_f32 v30, v%d, v%d, v%d" % (PQ, PQ + 1, PQ + 2))
        a("v_min3_f32 v31, v%d, v%d, v%d" % (PQ, PQ + 1, PQ + 2))
        for i in range(3, 11, 2):
            a("v_max3_f32 v30, v%d, v%d, v30" % (PQ + i, PQ + i + 1))
            a("v_min3_f32 v31, v%d, v%d, v31" % (PQ + i, PQ + i + 1))
        a("v_max_f32 v30, v%d, v30" % (PQ + 11))
        a("v_min_f32 v31, v%d, v31" % (PQ + 11))
        a("v_max3_f32 v30, v26, v27, v30")
        a("v_min3_f32 v31, v144, v145, v31")
        a("v_max3_f32 v30, v28, v29, v30")
        a("v_min3_f32 v31, v146, v147, v31")
        xhalf_op(a, "v_max_f32", 30, 12)
        xhalf_op(a, "v_min_f32", 31, 12)
        a("v_mov_b32 v24, %s" % f2u(LOG2E))
        a("v_mul_f32 v30, %s, v30" % f2u(-LOG2E))
        a("v_mul_f32 v31, %s, v31" % f2u(LOG2E))
        for i in range(16):
            a("v_fma_f32 v%d, v%d, v24, v30" % (EP + i, PQ + i))
            a("v_fma_f32 v%d, -v%d, v24, v31" % (EM + i, PQ + i))
        for i in range(16):
            a("v_exp_f32 v%d, v%d" % (EP + i, EP + i))
            a("v_exp_f32 v%d, v%d" % (EM + i, EM + i))
        a.nop(1)
        for i in range(12, 16):
            a("v_cndmask_b32 v%d, v%d, 0, s[60:61]" % (EP + i, EP + i))
            a("v_cndmask_b32 v%d, v%d, 0, s[60:61]" % (EM + i, EM + i))
        a("v_add_f32 v30, v%d, v%d" % (EP, EP + 1))
        a("v_add_f32 v31, v%d, v%d" % (EM, EM + 1))
        for i in range(2, 16):
            a("v_add_f32 v30, v%d, v30" % (EP + i))
            a("v_add_f32 v31, v%d, v31" % (EM + i))
        xhalf_sum(a, 30, 12)
        xhalf_sum(a, 31, 12)
        a("v_rcp_f32 v30, v30")
        a("v_rcp_f32 v31, v31")
        a.nop(1)
        for i in range(16):
            a("v_mul_f32 v%d, v30, v%d" % (EP + i, EP + i))
            a("v_mul_f32 v%d, v31, v%d" % (EM + i, EM + i))
        for i in range(8):
            a("v_cvt_pk_bf16_f32 v%d, v%d, v%d" % (EP + i, EP + 2 * i, EP + 2 * i + 1))
            a("v_cvt_pk_bf16_f32 v%d, v%d, v%d" % (EM + i, EM + 2 * i, EM + 2 * i + 1))
    feature_map(KA, 16)
    a("v_lshlrev_b32 v12, 6, v3")
    a("v_lshl_add_u32 v12, v4, 3, v12")
    a("v_add_u32 v12, s13, v12")
    for g in range(4):
        a("ds_write_b64 v12, %s offset:%d" % (vr(EP + 2 * g, 2), 16 * g))
        a("ds_write_b64 v12, %s offset:%d" % (vr(EM + 2 * g, 2), 2048 + 16 * g))
    stamp(a, name, 8)
    RS = 64; MR = 80
    for g in range(4):
        a("ds_read_b128 %s, v13 offset:%d" % (vr(RS + 4 * g, 4), 4096 + 32 * g))
        a("ds_read_b128 %s, v13 offset:%d" % (vr(MR + 4 * g, 4), 4224 + 32 * g))
    a("v_cmp_gt_u32 vcc, 28, v3")
    a("v_mov_b32 v24, 0")
    a("v_mov_b32 v25, 1.0")
    a("v_cmp_eq_u32 s[62:63], 28, v3")
    a.nop(2)
    a("v_cndmask_b32 v24, v24, v25, s[62:63]")
    a("s_waitcnt lgkmcnt(0)")
    for i in range(16):
        a("v_mul_f32 v%d, v56, v%d" % (MR + i, MR + i))
        a("v_fma_f32 v%d, v%d, v%d, v%d" % (MR + i, VA + i, RS + i, MR + i))
        a("v_cndmask_b32 v%d, v24, v%d, vcc" % (MR + i, MR + i))
    for i in range(8):
        a("v_cvt_pk_bf16_f32 v%d, v%d, v%d" % (PQ + i, MR + 2 * i, MR + 2 * i + 1))
    a("v_and_b32 v26, 15, v1")
    a("v_lshrrev_b32 v27, 2, v26")
    a("v_and_b32 v26, 3, v26")
    a("v_lshlrev_b32 v26, 3, v26")
    a("v_lshl_add_u32 v27, v4, 2, v27")
    a("v_lshl_add_u32 v26, v27, 6, v26")
    a("v_bfe_u32 v27, v1, 4, 1")
    a("v_lshl_add_u32 v26, v27, 5, v26")
    a("v_add_u32 v26, s13, v26")
    FA = 144
    for sg in range(2):
        for s in range(2):
            base = FA + 8 * sg + 4 * s
            a("ds_read_b64_tr_b16 %s, v26 offset:%d" % (vr(base, 2), sg * 2048 + s * 1024))
            a("ds_read_b64_tr_b16 %s, v26 offset:%d" % (vr(base + 2, 2), sg * 2048 + s * 1024 + 512))
    a("s_waitcnt lgkmcnt(0)")
    for sg in range(2):
        dst = KA if sg == 0 else VA
        a("v_mfma_f32_32x32x16_bf16 %s, %s, %s, 0" % (vr(dst, 16), vr(FA + 8 * sg, 4), vr(PQ, 4)))
        a("v_mfma_f32_32x32x16_bf16 %s, %s, %s, %s" % (vr(dst, 16), vr(FA + 8 * sg + 4, 4), vr(PQ + 4, 4), vr(dst, 16)))
    a("s_barrier")
    a.nop(12)
    dstamp(a, name, 14)
    a("s_lshl_b32 s12, s3, 13")
    a("v_lshlrev_b32 v12, 5, v1")
    a("v_add_u32 v12, s12, v12")
    for sg in range(2):
        src = KA if sg == 0 else VA
        for q in range(4):
            a("ds_write_b128 v12, %s offset:%d" % (vr(src + 4 * q, 4), (2 * sg + (q >> 1)) * 2048 + (q & 1) * 16))
    a("s_waitcnt lgkmcnt(0)")
    a("s_barrier")
    a("v_lshlrev_b32 v12, 2, v0")
    for i in range(8):
        for w in range(4):
            a("ds_read_b32 v%d, v12 offset:%d" % (64 + 4 * i + w, w * 8192 + i * 1024))
    a("s_lshl_b32 s12, s5, 13")
    for i in range(8):
        a("s_waitcnt lgkmcnt(%d)" % min(15, 28 - 4 * i))
        b = 64 + 4 * i
        a("v_add_f32 v%d, v%d, v%d" % (b, b, b + 1))
        a("v_add_f32 v%d, v%d, v%d" % (b + 2, b + 2, b + 3))
        a("v_add_f32 v%d, v%d, v%d" % (b, b, b + 2))
        a("buffer_atomic_add_f32 v%d, v12, s[56:59], s12 offen offset:%d sc1" % (b, (i & 3) * 1024))
        if i == 3:
            a("s_add_u32 s12, s12, 4096")
    a("s_lshl_b32 s12, s2, 2")
    a("s_add_u32 s12, s12, %d" % F_KV(layer))
    signal(a, "s12")
    aggregator(a, layer)
    k2_pre(a)
    a("s_mov_b32 s60, 0")
    a("s_mov_b32 s61, -1")
    feature_map(QA, 240)
    for i in range(8):
        a("v_mov_b32 v%d, v%d" % (224 + i, EP + i))
        a("v_mov_b32 v%d, v%d" % (232 + i, EM + i))
    srd(a, 52, P_WS, 2 << 20, WS_PHIQ[layer])
    a("s_and_b32 s13, s2, 15")
    a("s_lshl_b32 s13, s13, 7")
    a("s_add_u32 s13, s13, %d" % F_GO(layer))
    a("v_lshlrev_b32 v8, 5, v1")
    a("s_lshl_b32 s10, s5, 13")
    wait_cnt(a, 72, "s13", 1, 0, 3)
    for f in range(4):
        for u in range(2):
            a("buffer_load_dwordx4 %s, v8, s[56:59], s10 offen offset:%d" % (vr(64 + 8 * f + 4 * u, 4), (f & 1) * 2048 + 16 * u))
        if f == 1:
            a("s_add_u32 s10, s10, 4096")
    a("s_waitcnt vmcnt(0)")
    for i in range(16):
        a("v_cvt_pk_bf16_f32 v%d, v%d, v%d" % (96 + i, 64 + 2 * i, 64 + 2 * i + 1))
    a.nop(2)
    for f in range(4):
        a("v_mfma_f32_32x32x16_bf16 %s, %s, %s, %s" % (vr(176, 16), vr(96 + 4 * f, 4), vr(224 + 4 * f, 4), "0" if f == 0 else vr(176, 16)))
    a.nop(16)
    a("v_mov_b32 v13, v188")
    a("v_mov_b32 v12, v188")
    a.nop(2)
    a("v_permlane32_swap_b32 v13, v12")
    a.nop(1)
    a("v_add_f32 v12, %s, v12" % f2u(1e-6))
    a("v_rcp_f32 v12, v12")
    a.nop(1)
    for i in range(16):
        a("v_mul_f32 v%d, v12, v%d" % (176 + i, 176 + i))
    for i in range(8):
        a("v_cvt_pk_bf16_f32 v%d, v%d, v%d" % (64 + i, 176 + 2 * i, 176 + 2 * i + 1))
    a("s_lshl_b32 s12, s6, 15")
    a("s_lshl_b32 s13, s5, 11")
    a("s_add_u32 s12, s12, s13")
    a("buffer_store_dwordx4 v[64:67], v9, s[52:55], s12 offen sc1")
    a("buffer_store_dwordx4 v[68:71], v9, s[52:55], s12 offen offset:1024 sc1")
    a("s_lshl_b32 s12, s4, 7")
    a("s_lshl_b32 s13, s5, 2")
    a("s_add_u32 s12, s12, s13")
    a("s_add_u32 s12, s12, %d" % F_O(layer))
    signal(a, "s12")

def tile64(a):
    a("s_and_b32 s4, s2, 7")
    a("s_lshr_b32 s5, s2, 3")
    a("s_mul_hi_u32 s6, s5, 0x24924925")
    a("s_mul_i32 s7, s6, 7")
    a("s_sub_u32 s5, s5, s7")
    a("s_lshl_b32 s4, s4, 2")
    a("s_add_u32 s4, s4, s6")

def grp_flag(a, base):
    a("s_lshr_b32 s62, s4, 1")
    a("s_lshl_b32 s62, s62, 7")
    a("s_and_b32 s63, s4, 1")
    a("s_mul_i32 s63, s63, 7")
    a("s_add_u32 s63, s63, s5")
    a("s_lshl_b32 s63, s63, 2")
    a("s_add_u32 s62, s62, s63")
    a("s_add_u32 s62, s62, %d" % base)

def k2_pre(a):
    a("s_lshr_b32 s13, s2, 3")
    a("s_mul_hi_u32 s14, s13, 0x24924925")
    a("s_mul_i32 s14, s14, 7")
    a("s_sub_u32 s13, s13, s14")
    srd(a, 44, P_WS, 14 * 32768, WS_WO)
    a("s_lshl_b32 s13, s13, 16")
    a("s_lshl_b32 s14, s3, 14")
    a("s_add_u32 s13, s13, s14")
    a("s_add_u32 s14, s14, 65536")
    for i in range(16):
        a("s_add_u32 s11, s13, %d" % (1024 * i))
        a("s_add_u32 m0, s14, %d" % (1024 * i))
        a.nop(1)
        a("buffer_load_dwordx4 v9, s[44:47], s11 offen lds")

def gen_k2(a, layer):
    name = "k2l%d" % layer
    a("s_cmp_ge_u32 s2, 224")
    a("s_cbranch_scc1 %s_end" % name)
    tile64(a)
    srd(a, 40, P_WS, NXB, WS_XF if layer == 0 else WS_X2)
    srd(a, 48, P_WS, 2 << 20, WS_PHIQ[layer])
    srd(a, 52, P_WS, NXB, WS_X1[layer])
    a("v_lshlrev_b32 v9, 4, v1")
    a("s_and_b32 s6, s3, 1")
    a("s_lshr_b32 s7, s3, 1")
    a("s_lshl_b32 s8, s4, 1")
    a("s_add_u32 s8, s8, s6")
    a("s_lshl_b32 s15, s5, 1")
    a("s_add_u32 s15, s15, s7")
    a("s_mul_i32 s12, s8, 28672")
    a("s_lshl_b32 s14, s15, 11")
    a("s_add_u32 s12, s12, s14")
    a("s_lshl_b32 s9, s4, 16")
    a("s_lshl_b32 s10, s3, 14")
    a("s_add_u32 s9, s9, s10")
    a("s_lshr_b32 s13, s4, 1")
    a("s_lshl_b32 s13, s13, 7")
    a("s_add_u32 s13, s13, %d" % F_O(layer))
    dstamp(a, name, 10)
    wait_cnt(a, 72, "s13", 16, 0, 2)
    dstamp(a, name, 11)
    for i in range(16):
        a("s_add_u32 s11, s9, %d" % (1024 * i))
        a("s_add_u32 m0, s10, %d" % (1024 * i))
        a.nop(1)
        a("buffer_load_dwordx4 v9, s[48:51], s11 offen lds")
    a("buffer_load_dwordx4 v[40:43], v9, s[40:43], s12 offen")
    a("buffer_load_dwordx4 v[44:47], v9, s[40:43], s12 offen offset:1024")
    a("s_lshl_b32 s11, s6, 15")
    a("v_add_u32 v10, s11, v9")
    a("s_lshl_b32 s11, s7, 15")
    a("s_add_u32 s11, s11, 65536")
    a("v_add_u32 v11, s11, v9")
    a("s_waitcnt vmcnt(2)")
    a("s_barrier")
    dstamp(a, name, 12)
    ACC = 16
    NP = 6
    def rd(i):
        b = 64 + 8 * (i % NP)
        a("ds_read_b128 %s, v10 offset:%d" % (vr(b, 4), 1024 * i))
        a("ds_read_b128 %s, v11 offset:%d" % (vr(b + 4, 4), 1024 * i))
    for i in range(NP - 1):
        rd(i)
    for i in range(32):
        if i + NP - 1 < 32:
            rd(i + NP - 1)
            a("s_waitcnt lgkmcnt(%d)" % (2 * (NP - 1)))
        else:
            a("s_waitcnt lgkmcnt(%d)" % (2 * (31 - i)))
        b = 64 + 8 * (i % NP)
        a("v_mfma_f32_32x32x16_bf16 %s, %s, %s, %s" % (vr(ACC, 16), vr(b + 4, 4), vr(b, 4), "0" if i == 0 else vr(ACC, 16)))
    dstamp(a, name, 13)
    a("s_barrier")
    a("s_waitcnt vmcnt(0)")
    unswap(a, 40)
    a.nop(12)
    for g in range(4):
        for e in range(2):
            src = 40 + 2 * g + e
            i0 = ACC + 4 * g + 2 * e
            a("v_lshlrev_b32 v14, 16, v%d" % src)
            a("v_and_b32 v15, 0xffff0000, v%d" % src)
            a("v_add_f32 v%d, v%d, v14" % (i0, i0))
            a("v_add_f32 v%d, v%d, v15" % (i0 + 1, i0 + 1))
            a("v_cvt_pk_bf16_f32 v%d, v%d, v%d" % (src, i0, i0 + 1))
    swap_store(a, 40, 9, 52, "s12", 0, " sc1")
    grp_flag(a, C_23(layer))
    signal(a, "s62")
    k3_pre(a)
    a.label("%s_end" % name)

def k3_pre(a):
    a("s_lshr_b32 s8, s2, 4")
    srd(a, 44, P_WS, 56 * 28672, WS_W1)
    a("s_mul_i32 s8, s8, %d" % (4 * 28672))
    a("s_lshl_b32 s10, s3, 10")
    a("s_add_u32 s8, s8, s10")
    for i in range(28):
        a("s_add_u32 s12, s8, %d" % (i * 4096))
        a("s_add_u32 m0, s10, %d" % (i * 4096))
        a.nop(1)
        a("buffer_load_dwordx4 v9, s[44:47], s12 offen lds")

def gen_k3(a, layer):
    name = "k3l%d" % layer
    a("s_cmp_ge_u32 s2, 224")
    a("s_cbranch_scc1 %s_end" % name)
    a("s_and_b32 s4, s2, 7")
    a("s_lshr_b32 s5, s2, 3")
    a("s_lshr_b32 s6, s5, 1")
    a("s_and_b32 s5, s5, 1")
    a("s_lshl_b32 s4, s4, 1")
    a("s_add_u32 s4, s4, s5")
    a("s_mov_b32 s5, s6")
    srd(a, 40, P_WS, NXB, WS_X1[layer])
    srd(a, 44, P_WS, 56 * 28672, WS_W1)
    srd(a, 48, P_B1, F * 2)
    srd(a, 52, P_WS, S * F * 2, WS_H[layer])
    srd(a, 56, P_WS, 8192, WS_CS1)
    A0 = 64; ACC = 176; BF = 208
    a("v_lshlrev_b32 v9, 4, v1")
    a("s_lshl_b32 s6, s4, 2")
    a("s_add_u32 s6, s6, s3")
    a("v_lshlrev_b32 v8, 3, v4")
    a("s_lshl_b32 s11, s5, 8")
    for t in range(4):
        for g in range(4):
            a("buffer_load_dwordx2 %s, v8, s[48:51], s11 offen offset:%d" % (vr(32 + 8 * t + 2 * g, 2), 64 * t + 16 * g))
    a("v_add_u32 v10, 57344, v9")
    a("v_lshlrev_b32 v7, 4, v4")
    a("s_lshl_b32 s14, s5, 9")
    a("s_lshl_b32 s12, s4, 7")
    a("s_add_u32 s12, s12, %d" % C_23(layer))
    dstamp(a, name, 10)
    wait_cnt(a, 72, "s12", 14, 0, 2)
    dstamp(a, name, 11)
    a("s_mul_i32 s7, s6, 28672")
    for s in range(28):
        if s % 4 == 0 and s:
            a("s_add_u32 s7, s7, 4096")
        a("buffer_load_dwordx4 %s, v9, s[40:43], s7 offen offset:%d" % (vr(A0 + 4 * s, 4), 1024 * (s % 4)))
    a("v_mov_b32 v21, %s" % f2u(-2.0 * 0.7978845608028654 * LOG2E * 0.044715))
    C1 = -2.0 * 0.7978845608028654 * LOG2E
    a("s_mul_i32 s15, s6, %d" % (112 * 1024))
    a("s_lshl_b32 s13, s5, 13")
    a("s_add_u32 s15, s15, s13")
    a("s_add_u32 s63, s15, 4096")
    a("v_mov_b32 v14, 0")
    a("v_mov_b32 v15, 0")
    a("s_waitcnt vmcnt(28)")
    a("s_barrier")
    dstamp(a, name, 12)
    NB = 4
    seq = [(t, s) for t in range(4) for s in range(28)]
    def breads(idx):
        t, s = seq[idx]
        a("ds_read_b128 %s, v%d offset:%d" % (vr(BF + 4 * (idx % NB), 4), 10 if t >= 2 else 9, (t & 1) * 28672 + s * 1024))
    def epi_ops(t):
        ops = []
        acc = ACC + 16 * (t & 1)
        CSR = 224 + 16 * (t & 1)
        for i in range(16):
            g, e = i >> 2, i & 3
            braw = 32 + 8 * t + 2 * g + (e >> 1)
            x = acc + i
            tmp = 22 + (i & 1)
            if e & 1:
                ops.append("v_and_b32 v%d, 0xffff0000, v%d" % (tmp, braw))
            else:
                ops.append("v_lshlrev_b32 v%d, 16, v%d" % (tmp, braw))
            ops.append("v_fma_f32 v%d, v%d, v17, v%d" % (tmp, CSR + i, tmp))
            ops.append("v_fma_f32 v%d, v%d, v18, v%d" % (x, x, tmp))
            ops.append("v_mul_f32 v%d, v%d, v%d" % (tmp, x, x))
            ops.append("v_fmaak_f32 v%d, v21, v%d, %s" % (tmp, tmp, f2u(C1)))
            ops.append("v_mul_f32 v%d, v%d, v%d" % (tmp, x, tmp))
            ops.append("v_exp_f32 v%d, v%d" % (tmp, tmp))
            ops.append("s_nop 0")
            ops.append("v_add_f32 v%d, 1.0, v%d" % (tmp, tmp))
            ops.append("v_rcp_f32 v%d, v%d" % (tmp, tmp))
            ops.append("s_nop 0")
            ops.append("v_mul_f32 v%d, v%d, v%d" % (x, x, tmp))
        for i in range(8):
            ops.append("v_cvt_pk_bf16_f32 v%d, v%d, v%d" % (acc + i, acc + 2 * i, acc + 2 * i + 1))
        return ops
    pending = []
    for i in range(NB - 1):
        breads(i)
    for idx, (t, s) in enumerate(seq):
        if s == 0:
            for g in range(4):
                a("buffer_load_dwordx4 %s, v7, s[56:59], s14 offen offset:%d" % (vr(224 + 16 * (t & 1) + 4 * g, 4), 128 * t + 32 * g))
        w = ""
        if t == 0:
            w = "vmcnt(%d) " % (27 - s + 4)
        if idx + NB - 1 < len(seq):
            breads(idx + NB - 1)
            a("s_waitcnt %slgkmcnt(%d)" % (w, NB - 1))
        else:
            a("s_waitcnt %slgkmcnt(%d)" % (w, len(seq) - 1 - idx))
        b = BF + 4 * (idx % NB)
        acc = ACC + 16 * (t & 1)
        a("v_mfma_f32_32x32x16_bf16 %s, %s, %s, %s" % (vr(acc, 16), vr(b, 4), vr(A0 + 4 * s, 4), "0" if s == 0 else vr(acc, 16)))
        if pending and s >= 2:
            n = min(len(pending), 8)
            for o in pending[:n]:
                a(o)
            pending = pending[n:]
            if not pending:
                swap_store(a, ACC + 16 * ((t - 1) & 1), 9, 52, "s15" if t - 1 < 2 else "s63", 2048 * ((t - 1) & 1), " sc1")
        if s == 27:
            assert not pending
            if t == 0:
                ln_stats(a, A0, 14, 15, 16, 17, 18)
            pending = epi_ops(t)
            a("s_waitcnt vmcnt(%d)" % (2 if t >= 1 else 0))
            if t == 3:
                a("s_barrier")
                a.nop(14)
                for o in pending:
                    a(o)
                pending = []
                swap_store(a, ACC + 16 * (t & 1), 9, 52, "s63", 2048 * (t & 1), " sc1")
    dstamp(a, name, 13)
    a("s_lshl_b32 s62, s4, 7")
    a("s_lshl_b32 s63, s5, 2")
    a("s_add_u32 s62, s62, s63")
    a("s_add_u32 s62, s62, %d" % C_34(layer))
    signal(a, "s62")
    k4_pre(a)
    a.label("%s_end" % name)

def k4_pre(a):
    a("s_lshr_b32 s13, s2, 3")
    a("s_mul_hi_u32 s14, s13, 0x24924925")
    a("s_mul_i32 s14, s14, 7")
    a("s_sub_u32 s13, s13, s14")
    srd(a, 44, P_WS, 14 * 112 * 1024, WS_W2)
    a("s_and_b32 s8, s3, 1")
    a("s_lshr_b32 s9, s3, 1")
    a("s_lshl_b32 s9, s9, 11")
    a("s_lshl_b32 s10, s13, 1")
    a("s_add_u32 s10, s10, s8")
    a("s_mul_i32 s10, s10, %d" % (112 * 1024))
    a("s_add_u32 s10, s10, s9")
    a("s_lshl_b32 s12, s8, 12")
    a("s_add_u32 s12, s12, s9")
    for st in range(9):
        for i in range(2):
            a("s_add_u32 s14, s10, %d" % (st * 4096 + i * 1024))
            a("s_add_u32 m0, s12, %d" % (81920 + st * 8192 + i * 1024))
            a.nop(1)
            a("buffer_load_dwordx4 v9, s[44:47], s14 offen lds")

def gen_k4(a, layer):
    name = "k4l%d" % layer
    a("s_cmp_ge_u32 s2, 224")
    a("s_cbranch_scc1 %s_end" % name)
    tile64(a)
    srd(a, 40, P_WS, S * F * 2, WS_H[layer])
    srd(a, 44, P_WS, 14 * 112 * 1024, WS_W2)
    srd(a, 48, P_WS, NXB, WS_X1[layer])
    if layer == 0:
        srd(a, 52, P_WS, NXB, WS_X2)
    else:
        srd(a, 52, P_OUT, NXB)
    srd(a, 56, P_B2, D * 2)
    ACC = 64; FR = 80
    a("v_lshlrev_b32 v9, 4, v1")
    a("s_and_b32 s6, s3, 1")
    a("s_lshr_b32 s7, s3, 1")
    a("s_lshl_b32 s8, s4, 1")
    a("s_add_u32 s8, s8, s6")
    a("s_mul_i32 s8, s8, %d" % (112 * 1024))
    a("s_lshl_b32 s9, s7, 11")
    a("s_add_u32 s8, s8, s9")
    a("s_lshl_b32 s10, s5, 1")
    a("s_add_u32 s10, s10, s6")
    a("s_mul_i32 s10, s10, %d" % (112 * 1024))
    a("s_add_u32 s10, s10, s9")
    a("s_lshl_b32 s12, s6, 12")
    a("s_add_u32 s12, s12, s9")
    NS = 10
    order = []
    def dmaA(stage):
        slot = (stage % NS) * 8192
        order.append(("A", stage))
        for i in range(2):
            a("s_add_u32 s14, s8, %d" % (stage * 4096 + i * 1024))
            a("s_add_u32 m0, s12, %d" % (slot + i * 1024))
            a.nop(1)
            a("buffer_load_dwordx4 v9, s[40:43], s14 offen lds")
    def dmaB(stage):
        slot = 81920 + (stage % 10) * 8192
        order.append(("B", stage))
        for i in range(2):
            a("s_add_u32 s14, s10, %d" % (stage * 4096 + i * 1024))
            a("s_add_u32 m0, s12, %d" % (slot + i * 1024))
            a.nop(1)
            a("buffer_load_dwordx4 v9, s[44:47], s14 offen lds")
    a("s_lshl_b32 s13, s4, 1")
    a("s_add_u32 s13, s13, s6")
    a("s_lshl_b32 s15, s5, 1")
    a("s_add_u32 s15, s15, s7")
    a("s_mul_i32 s60, s13, 28672")
    a("s_lshl_b32 s61, s15, 11")
    a("s_add_u32 s60, s60, s61")
    a("v_lshlrev_b32 v12, 3, v4")
    a("s_lshl_b32 s61, s15, 6")
    for g in range(4):
        a("buffer_load_dwordx2 %s, v12, s[56:59], s61 offen offset:%d" % (vr(40 + 2 * g, 2), 16 * g))
    a("s_lshl_b32 s62, s3, 10")
    a("v_add_u32 v13, s62, v9")
    a("s_add_u32 s62, s62, 81920")
    a("v_add_u32 v14, s62, v9")
    a("v_add_u32 v16, 40960, v14")
    a("v_add_u32 v15, 40960, v13")
    a("s_lshr_b32 s62, s4, 1")
    a("s_lshl_b32 s62, s62, 7")
    a("s_add_u32 s62, s62, %d" % C_34(layer))
    dstamp(a, name, 10)
    wait_cnt(a, 72, "s62", 14, 0, 2)
    dstamp(a, name, 11)
    a("buffer_load_dwordx4 v[32:35], v9, s[48:51], s60 offen")
    a("buffer_load_dwordx4 v[36:39], v9, s[48:51], s60 offen offset:1024")
    for st in range(NS - 1):
        dmaA(st)
    def rdstage(st):
        slot = (st % NS) * 8192
        va, vb, so = (13, 14, slot) if slot < 40960 else (15, 16, slot - 40960)
        fb = FR + 16 * (st & 1)
        for u in range(2):
            a("ds_read_b128 %s, v%d offset:%d" % (vr(fb + 4 * u, 4), va, so + 4096 * u))
            a("ds_read_b128 %s, v%d offset:%d" % (vr(fb + 8 + 4 * u, 4), vb, so + 4096 * u))
    def sync(st):
        idx = order.index(("A", st))
        if ("B", st) in order:
            idx = max(idx, order.index(("B", st)))
        n = 2 * (len(order) - 1 - idx)
        a("s_waitcnt vmcnt(%d)" % n)
        a("s_barrier")
    sync(0)
    rdstage(0)
    for st in range(28):
        if st + 1 < 28:
            sync(st + 1)
            if st + NS - 1 < 28:
                pass
            rdstage(st + 1)
            if st >= 1 and st + NS - 2 < 28:
                dmaA(st + NS - 2)
            if st >= 1 and st + 8 < 28:
                dmaB(st + 8)
            a("s_waitcnt lgkmcnt(4)")
        else:
            a("s_waitcnt lgkmcnt(0)")
        fb = FR + 16 * (st & 1)
        for rg in range(2):
            for cg in range(2):
                acc = 128 + 16 * (rg + 2 * cg)
                a("v_mfma_f32_32x32x16_bf16 %s, %s, %s, %s" % (vr(acc, 16), vr(fb + 8 + 4 * cg, 4), vr(fb + 4 * rg, 4), "0" if st == 0 else vr(acc, 16)))
    a("s_barrier")
    a.nop(14)
    a("s_lshl_b32 s62, s3, 12")
    a("v_add_u32 v17, s62, v9")
    for o in range(4):
        for q in range(4):
            a("ds_write_b128 v17, %s offset:%d" % (vr(128 + 16 * o + 4 * q, 4), o * 16384 + q * 1024))
    a("s_lshl_b32 s62, s3, 14")
    a("v_add_u32 v17, s62, v9")
    a("s_waitcnt lgkmcnt(0)")
    a("s_barrier")
    for sw in range(4):
        for q in range(4):
            a("ds_read_b128 %s, v17 offset:%d" % (vr(128 + 16 * sw + 4 * q, 4), sw * 4096 + q * 1024))
    a("s_waitcnt lgkmcnt(0)")
    for i in range(16):
        a("v_add_f32 v%d, v%d, v%d" % (128 + i, 128 + i, 144 + i))
        a("v_add_f32 v%d, v%d, v%d" % (160 + i, 160 + i, 176 + i))
        a("v_add_f32 v%d, v%d, v%d" % (ACC + i, 128 + i, 160 + i))
    dstamp(a, name, 13)
    a("s_barrier")
    unswap(a, 32)
    a.nop(12)
    for g in range(4):
        for e in range(2):
            src = 32 + 2 * g + e
            bsrc = 40 + 2 * g + e
            i0 = ACC + 4 * g + 2 * e
            a("v_lshlrev_b32 v20, 16, v%d" % src)
            a("v_and_b32 v21, 0xffff0000, v%d" % src)
            a("v_lshlrev_b32 v22, 16, v%d" % bsrc)
            a("v_and_b32 v23, 0xffff0000, v%d" % bsrc)
            a("v_add_f32 v%d, v%d, v22" % (i0, i0))
            a("v_add_f32 v%d, v%d, v23" % (i0 + 1, i0 + 1))
            a("v_add_f32 v%d, v%d, v20" % (i0, i0))
            a("v_add_f32 v%d, v%d, v21" % (i0 + 1, i0 + 1))
            a("v_cvt_pk_bf16_f32 v%d, v%d, v%d" % (src, i0, i0 + 1))
    if layer == 0:
        swap_store(a, 32, 9, 52, "s60", 0, " sc1")
        grp_flag(a, C_41)
        signal(a, "s62")
        k1_pre(a, "k1pa")
        a("s_branch k4l0_done")
    else:
        a.nop(1)
        for p in range(2):
            b = 32 + 4 * p
            a("v_permlane32_swap_b32 v%d, v%d" % (b, b + 2))
            a("v_permlane32_swap_b32 v%d, v%d" % (b + 1, b + 3))
        a("s_lshl_b32 s62, s13, 5")
        a("v_add_u32 v17, s62, v3")
        a("v_mul_u32_u24 v17, 896, v17")
        a("v_lshl_add_u32 v17, v4, 4, v17")
        for p in range(2):
            a("buffer_store_dwordx4 %s, v17, s[52:55], s61 offen offset:%d" % (vr(32 + 4 * p, 4), 32 * p))
    a.label("%s_end" % name)
    if layer == 0:
        k1_pre(a, "k1pb")
        a.label("k4l0_done")

def main():
    a = Asm()
    prologue(a, KNAME, 256)
    srd(a, 72, P_WS, 32768, WS_CNT)
    srd(a, 76, P_DBG, 256)
    gen_k0(a)
    stamp(a, KNAME, 1)
    a("s_lshr_b32 s14, s2, 4")
    a("s_mul_i32 s14, s14, 12")
    wait_cnt(a, 72, "s14", 3, 0, 2)
    k1_pre(a, "k1p0")
    for layer in range(2):
        gen_k1(a, layer); stamp(a, KNAME, 2 + 4 * layer)
        gen_k2(a, layer); stamp(a, KNAME, 3 + 4 * layer)
        gen_k3(a, layer); stamp(a, KNAME, 4 + 4 * layer)
        gen_k4(a, layer); stamp(a, KNAME, 5 + 4 * layer)
    epilogue(a, KNAME)
    hdr = open("cdna_kernels/%s.s.ref" % NAME).read().split("\n")
    out = [l for l in hdr[:13]]
    out.append("; @launch kernel=%s grid=(256,1,1) block=(256,1,1) lds=%d" % (KNAME, 163840))
    out.append('.amdgcn_target "amdgcn-amd-amdhsa--gfx950"')
    out.append(".text")
    out.append(".globl %s" % KNAME)
    out += a.lines
    out.append('.section .rodata,"a"')
    out += [".p2align 6", ".amdhsa_kernel %s" % KNAME, "  .amdhsa_next_free_vgpr 256", "  .amdhsa_next_free_sgpr 100",
            "  .amdhsa_accum_offset 256", "  .amdhsa_group_segment_fixed_size 0", "  .amdhsa_kernarg_size 96",
            "  .amdhsa_user_sgpr_count 2", "  .amdhsa_user_sgpr_kernarg_segment_ptr 1", "  .amdhsa_system_sgpr_workgroup_id_x 1", ".end_amdhsa_kernel"]
    dst = sys.argv[1] if len(sys.argv) > 1 else "cdna_kernels/%s.s" % NAME
    open(dst, "w").write("\n".join(out) + "\n")

if __name__ == "__main__":
    main()
```
